```python
import torch

def _softmax(x, axis=-1):
    return torch.softmax(x, dim=axis)
def _gelu(x):
    return torch.nn.functional.gelu(x, approximate="tanh")
def _silu(x):
    return torch.nn.functional.silu(x)
def _sigmoid(x):
    return torch.sigmoid(x)
def _layernorm(x, axis=-1, eps=1e-5):
    m = x.mean(dim=axis, keepdim=True)
    v = x.var(dim=axis, keepdim=True, unbiased=False)
    return (x - m) / torch.sqrt(v + eps)
def _scatter_add(tgt, idx, src, axis=0):
    return tgt.clone().index_add_(axis, idx, src)
def _segment_sum(src, seg, n):
    out = torch.zeros((n,) + src.shape[1:], dtype=src.dtype)
    return out.index_add_(0, seg, src)
def _pad(x, pw):
    flat = tuple(v for pair in reversed(pw) for v in pair)
    return torch.nn.functional.pad(x, flat)

kernel_name = 'recurrent_scan__compressed_kv_cla__moe_arch_mod__decode'

def setup_inputs():

    _w = (lambda a: (lambda t: t.to(torch.bfloat16) if t.is_floating_point() else t)(torch.as_tensor(a)))
    def _A_setup():
        B, H, Sq, Sk, D, M = 4, 32, 1, 4096, 128, 512
        Dc = 4 * D
        return {
            "x": _w((lambda *s: torch.randn(*s, dtype=torch.bfloat16) * 0.05)(B, Sq, M)),
            "c_kv": _w((lambda *s: torch.randn(*s, dtype=torch.bfloat16) * 0.8)(B, Sk, Dc)),
            "w_q": _w((lambda *s: torch.randn(*s, dtype=torch.bfloat16) * 1.6)(M, H, D) * (M ** -0.5)),
            "w_uk": _w((lambda *s: torch.randn(*s, dtype=torch.bfloat16) * 1.6)(Dc, H, D) * (Dc ** -0.5)),
            "w_uv": _w((lambda *s: torch.randn(*s, dtype=torch.bfloat16) * 0.8)(Dc, H, D) * (Dc ** -0.5)),
            "w_o": _w((lambda *s: torch.randn(*s, dtype=torch.bfloat16) * 0.8)(H, D, M) * ((H * D) ** -0.5)),
        }
    _A_in = _A_setup()

    def _B_setup():
        B, S, D, F, C = 4, 1, 512, 1792, 1
        return {
            "x": _w((lambda *s: torch.randn(*s, dtype=torch.bfloat16) * 0.05)(B, S, D)),
            "w_r": _w((lambda *s: torch.randn(*s, dtype=torch.bfloat16) * 0.8)(D)),
            "w_gate": _w((lambda *s: torch.randn(*s, dtype=torch.bfloat16) * 0.2)(D, F)),
            "w_up": _w((lambda *s: torch.randn(*s, dtype=torch.bfloat16) * 0.2)(D, F)),
            "w_down": _w((lambda *s: torch.randn(*s, dtype=torch.bfloat16) * 0.2)(F, D)),
        }
    _B_in = _B_setup()

    return {
        "A_x": _A_in["x"],
        "A_c_kv": _A_in["c_kv"],
        "A_w_q": _A_in["w_q"],
        "A_w_uk": _A_in["w_uk"],
        "A_w_uv": _A_in["w_uv"],
        "A_w_o": _A_in["w_o"],
        "B_x": _B_in["x"],
        "B_w_r": _B_in["w_r"],
        "B_w_gate": _B_in["w_gate"],
        "B_w_up": _B_in["w_up"],
        "B_w_down": _B_in["w_down"],
    }

def reference(A_x, A_c_kv, A_w_q, A_w_uk, A_w_uv, A_w_o, B_x, B_w_r, B_w_gate, B_w_up, B_w_down):
    def _A_ref(x, c_kv, w_q, w_uk, w_uv, w_o):
        B, Sq, M = x.shape[0], x.shape[1], x.shape[2]
        Sk = c_kv.shape[1]
        H, D = w_q.shape[1], w_q.shape[2]
        q = torch.einsum("bqm,mhd->bhqd", x, w_q)
        k = torch.einsum("bkc,chd->bhkd", c_kv, w_uk)
        v = torch.einsum("bkc,chd->bhkd", c_kv, w_uv)
        scores = torch.einsum("bhqd,bhkd->bhqk", q, k) * (D ** -0.5)
        off = Sk - Sq
        qi = torch.arange(Sq)[:, None]
        kj = torch.arange(Sk)[None, :]
        cmask = kj <= (qi + off)
        scores = torch.where(cmask[None, None], scores, -1e9)
        p = _softmax(scores, axis=-1)
        ctx = torch.einsum("bhqk,bhkd->bhqd", p, v)
        return torch.einsum("bhqd,hdm->bqm", ctx, w_o)

    def _B_ref(x, w_r, w_gate, w_up, w_down):
        B, S, D = x.shape
        C = 1
        r = x @ w_r
        idx = torch.argsort(-r, axis=-1)[:, :C]
        idx_e = (lambda x, n, axis: torch.repeat_interleave(x, n, dim=axis))(idx.reshape(B, C, 1), D, axis=2)
        x_sel = (lambda x, i, axis: torch.take_along_dim(x, i, dim=axis))(x, idx_e, axis=1)
        g = _silu(x_sel @ w_gate)
        u = x_sel @ w_up
        y = (g * u) @ w_down
        r_sel = _sigmoid((lambda x, i, axis: torch.take_along_dim(x, i, dim=axis))(r, idx, axis=1))
        y = y * r_sel.reshape(B, C, 1)
        b_off = (torch.arange(B) * S).reshape(B, 1)
        flat_idx = (idx + b_off).reshape(B * C)
        zero = (x * 0.0).reshape(B * S, D)
        upd = _scatter_add(zero, flat_idx, y.reshape(B * C, D), axis=0)
        return x + upd.reshape(B, S, D)

    x = A_x
    xn = _layernorm(x, axis=-1)
    s = _A_ref(xn, A_c_kv, A_w_q, A_w_uk, A_w_uv, A_w_o)
    g = _silu(_B_ref(xn, B_w_r, B_w_gate, B_w_up, B_w_down))
    return x + s * g
```

```python
import sys

REF = 'recurrent_scan__compressed_kv_cla__moe_arch_mod__decode.s.ref'

WS_QA = 0x000000
WS_HH = 0x020000
WS_XN = 0x024000
WS_RS = 0x025000
WS_ML = 0x026000
WS_PART = 0x030000
WS_SP = 0x430000
WS_END = WS_SP + 368 * 8192

LOG2E = 0x3fb8aa3b
SCALE = 0x3db504f3
EPS = 0x3727c5ac


class A:
    def __init__(self):
        self.l = []

    def e(self, s):
        for line in s.strip().split('\n'):
            line = line.strip()
            if line:
                self.l.append('    ' + line)

    def lab(self, s):
        self.l.append(s + ':')

    def srd(self, d, base, nbytes):
        self.e(f"s_mov_b32 s{d}, s{base}")
        self.e(f"s_and_b32 s{d+1}, s{base+1}, 0xffff")
        self.e(f"s_mov_b32 s{d+2}, {hex(nbytes)}")
        self.e(f"s_mov_b32 s{d+3}, 0x00020000")

    def wave_sum(self, v):
        for n in (1, 2, 4, 8):
            self.e("s_nop 1")
            self.e(f"v_add_f32_dpp v{v}, v{v}, v{v} row_shr:{n} row_mask:0xf bank_mask:0xf bound_ctrl:0")
        self.e("s_nop 1")
        self.e(f"v_add_f32_dpp v{v}, v{v}, v{v} row_bcast:15 row_mask:0xa bank_mask:0xf")
        self.e("s_nop 1")
        self.e(f"v_add_f32_dpp v{v}, v{v}, v{v} row_bcast:31 row_mask:0xc bank_mask:0xf")

    def rne(self, d, s):
        self.e(f"v_cvt_pk_bf16_f32 v{d}, v{s}, v{s}")
        self.e(f"v_and_b32 v{d}, 0xffff0000, v{d}")

    def text(self):
        return '\n'.join(self.l) + '\n'


def kd(name, vgpr, sgpr=96):
    acc = (vgpr + 3) // 4 * 4
    return f""".p2align 6
.amdhsa_kernel {name}
  .amdhsa_next_free_vgpr {vgpr}
  .amdhsa_next_free_sgpr {sgpr}
  .amdhsa_accum_offset {acc}
  .amdhsa_group_segment_fixed_size 0
  .amdhsa_kernarg_size 112
  .amdhsa_user_sgpr_count 2
  .amdhsa_user_sgpr_kernarg_segment_ptr 1
  .amdhsa_system_sgpr_workgroup_id_x 1
.end_amdhsa_kernel
"""


def head(a, name):
    a.l.append(f".globl {name}\n.p2align 8\n.type {name},@function\n{name}:")


K1_WQ = 0
K1_GU = 131072
K1_XN = 147456
K1_QP = K1_XN + 4096
K1_GP = K1_QP + 8192
K1_LDS = K1_GP + 1024


def gen_k1(a):
    head(a, 'k1_kernel')
    e = a.e
    e("s_cmp_ge_u32 s2, 256")
    e("s_cbranch_scc1 K1_END")
    e("s_load_dwordx2 s[4:5], s[0:1], 0")
    e("s_load_dwordx4 s[8:11], s[0:1], 16")
    e("s_load_dwordx2 s[12:13], s[0:1], 56")
    e("s_load_dwordx4 s[16:19], s[0:1], 64")
    e("s_load_dwordx2 s[20:21], s[0:1], 104")
    e("v_and_b32 v1, 63, v0")
    e("v_lshrrev_b32 v4, 6, v0")
    e("v_lshrrev_b32 v2, 4, v1")
    e("v_and_b32 v3, 15, v1")
    e("v_readfirstlane_b32 s52, v4")
    e("s_and_b32 s57, s2, 7")
    e("s_lshr_b32 s58, s2, 3")
    e("s_and_b32 s59, s58, 3")
    e("s_lshl_b32 s53, s57, 2")
    e("s_add_u32 s53, s53, s59")
    e("s_lshr_b32 s54, s2, 5")
    e("s_lshr_b32 s59, s2, 6")
    e("s_lshl_b32 s59, s59, 3")
    e("s_add_u32 s59, s59, s57")
    e("s_mov_b32 s56, 1")
    e("s_cmp_lt_u32 s59, 28")
    e("s_cbranch_scc1 K1_LGOK")
    e("s_mov_b32 s56, 0")
    e("s_sub_u32 s59, s59, 8")
    a.lab("K1_LGOK")
    e("s_lshl_b32 s59, s59, 3")
    e("s_and_b32 s60, s58, 7")
    e("s_add_u32 s59, s59, s60")
    e("s_lshl_b32 s55, s59, 3")
    e("v_lshrrev_b32 v5, 1, v3")
    e("v_sub_u32 v6, v5, v2")
    e("v_and_b32 v7, 7, v6")
    e("v_subrev_u32 v6, 4, v6")
    e("v_and_b32 v8, 7, v6")
    e("v_and_b32 v9, 1, v3")
    e("v_lshlrev_b32 v10, 13, v2")
    e("v_lshl_or_b32 v7, v7, 1, v9")
    e("v_lshl_or_b32 v8, v8, 1, v9")
    e("v_lshl_add_u32 v7, v7, 4, v10")
    e("v_lshl_add_u32 v8, v8, 4, v10")
    e("v_lshlrev_b32 v11, 4, v1")
    e("v_mul_u32_u24 v12, 3584, v1")
    e("v_lshlrev_b32 v13, 13, v3")
    e("v_lshl_add_u32 v13, v2, 4, v13")
    e("s_waitcnt lgkmcnt(0)")
    a.srd(24, 4, 4096)
    a.srd(28, 8, 0x400000)
    a.srd(32, 10, 0x400000)
    a.srd(36, 12, 1024)
    a.srd(40, 16, 512 * 3584)
    a.srd(44, 18, 512 * 3584)
    a.srd(48, 20, WS_END)
    e("s_lshl_b32 s60, s52, 10")
    e("buffer_load_dwordx4 v[16:19], v11, s[24:27], s60 offen")
    e("buffer_load_dwordx4 v[20:23], v11, s[36:39], 0 offen")
    e("s_mul_i32 s61, s52, 128*3584")
    e("s_lshl_b32 s62, s55, 1")
    e("s_add_u32 s61, s61, s62")
    e("s_add_u32 s62, s61, 64*3584")
    e("s_lshl_b32 s63, s52, 11")
    e(f"s_add_u32 s63, s63, {K1_GU}")
    e("s_mov_b32 m0, s63")
    e("s_add_u32 s64, s63, 1024")
    e("buffer_load_dwordx4 v12, s[40:43], s61 offen lds")
    e("s_mov_b32 m0, s64")
    e("s_add_u32 s65, s63, 8192")
    e("buffer_load_dwordx4 v12, s[40:43], s62 offen lds")
    e("s_mov_b32 m0, s65")
    e("s_add_u32 s66, s64, 8192")
    e("buffer_load_dwordx4 v12, s[44:47], s61 offen lds")
    e("s_mov_b32 m0, s66")
    e("s_lshl_b32 s61, s52, 20")
    e("buffer_load_dwordx4 v12, s[44:47], s62 offen lds")
    e("s_lshl_b32 s62, s53, 8")
    e("s_add_u32 s61, s61, s62")
    e("s_lshl_b32 s63, s52, 15")
    for t in range(32):
        e(f"s_add_u32 m0, s63, {t*1024}")
        e(f"s_add_u32 s64, s61, {t*32768}")
        e(f"buffer_load_dwordx4 v{7 + ((t >> 1) & 1)}, s[28:31], s64 offen lds")
    e("s_lshl_b32 s61, s54, 6")
    e("s_lshl_b32 s64, s52, 4")
    e("s_add_u32 s61, s61, s64")
    e("s_lshl_b32 s61, s61, 13")
    e("s_add_u32 s61, s61, s62")
    for s in range(4):
        e(f"buffer_load_dwordx4 v[{24+4*s}:{27+4*s}], v13, s[32:35], s61 offen offset:{64*s}")
    e("s_waitcnt vmcnt(40)")
    for i in range(4):
        e(f"v_lshlrev_b32 v{40+2*i}, 16, v{16+i}")
        e(f"v_and_b32 v{41+2*i}, 0xffff0000, v{16+i}")
    e("v_add_f32 v48, v40, v41")
    e("v_add_f32 v49, v42, v43")
    e("v_add_f32 v50, v44, v45")
    e("v_add_f32 v51, v46, v47")
    e("v_add_f32 v48, v48, v49")
    e("v_add_f32 v50, v50, v51")
    e("v_add_f32 v48, v48, v50")
    a.wave_sum(48)
    e("s_nop 1")
    e("v_readlane_b32 s70, v48, 63")
    e("s_nop 3")
    e("v_mov_b32 v49, 0x3b000000")
    e("v_mul_f32 v49, s70, v49")
    e("v_mov_b32 v50, 0")
    for i in range(8):
        e(f"v_sub_f32 v51, v{40+i}, v49")
        e("v_fmac_f32 v50, v51, v51")
    a.wave_sum(50)
    e("s_nop 1")
    e("v_readlane_b32 s71, v50, 63")
    e("s_nop 3")
    e("v_mov_b32 v50, 0x3b000000")
    e("v_mul_f32 v50, s71, v50")
    a.rne(49, 49)
    a.rne(50, 50)
    e(f"v_add_f32 v50, {hex(EPS)}, v50")
    a.rne(50, 50)
    e("v_sqrt_f32 v50, v50")
    e("s_nop 0")
    a.rne(50, 50)
    e("v_rcp_f32 v51, v50")
    e("s_nop 0")
    for i in range(8):
        r = 40 + i
        e(f"v_sub_f32 v{r}, v{r}, v49")
        a.rne(r, r)
        e(f"v_mul_f32 v52, v{r}, v51")
        e(f"v_fma_f32 v53, -v52, v50, v{r}")
        e(f"v_fma_f32 v{r}, v53, v51, v52")
    for i in range(4):
        e(f"v_cvt_pk_bf16_f32 v{52+i}, v{40+2*i}, v{41+2*i}")
    e("s_lshl_b32 s60, s52, 10")
    e(f"s_add_u32 s60, s60, {K1_XN}")
    e("v_add_u32 v56, s60, v11")
    e("ds_write_b128 v56, v[52:55]")
    e("s_waitcnt lgkmcnt(0)")
    e("s_barrier")
    e("v_and_b32 v4, 3, v3")
    e("v_lshlrev_b32 v4, 10, v4")
    e("v_lshl_add_u32 v4, v2, 4, v4")
    e("s_lshl_b32 s60, s52, 8")
    e(f"s_add_u32 s60, s60, {K1_XN}")
    e("v_add_u32 v4, s60, v4")
    for s in range(4):
        e(f"ds_read_b128 v[{56+4*s}:{59+4*s}], v4 offset:{64*s}")
    e("v_bfe_u32 v5, v1, 2, 2")
    e("v_and_b32 v6, 3, v1")
    e("v_and_b32 v9, 1, v2")
    e("v_lshl_add_u32 v9, v9, 2, v5")
    e("v_lshl_add_u32 v10, v2, 3, v5")
    e("v_lshlrev_b32 v11, 8, v10")
    e("v_lshl_add_u32 v11, v6, 3, v11")
    e("s_lshl_b32 s60, s52, 15")
    e("v_add_u32 v11, s60, v11")
    for t in range(8):
        e(f"v_add_u32 v12, {t}, v9")
        e("v_and_b32 v12, 7, v12")
        e(f"v_lshl_add_u32 v{72+t}, v12, 5, v11")
    e("v_lshrrev_b32 v12, 1, v6")
    e("v_lshlrev_b32 v12, 13, v12")
    e("v_lshl_add_u32 v12, v10, 4, v12")
    e("v_and_b32 v80, 1, v6")
    e("v_lshl_add_u32 v80, v80, 3, v12")
    e("s_lshl_b32 s60, s52, 11")
    e(f"s_add_u32 s60, s60, {K1_GU}")
    e("v_add_u32 v80, s60, v80")
    for s in range(4):
        e(f"s_waitcnt vmcnt({28 - 8*s})")
        for t in range(8):
            e(f"ds_read_b64_tr_b16 v[{132+4*t}:{133+4*t}], v{72+t} offset:{s*8192}")
            e(f"ds_read_b64_tr_b16 v[{134+4*t}:{135+4*t}], v{72+t} offset:{s*8192+1024}")
        e(f"ds_read_b64_tr_b16 v[164:165], v80 offset:{s*512}")
        e(f"ds_read_b64_tr_b16 v[166:167], v80 offset:{s*512+64}")
        for t in range(8):
            e(f"s_waitcnt lgkmcnt({min(15, 16 - 2*t)})")
            c = f"v[{96+4*t}:{99+4*t}]" if s else "0"
            e(f"v_mfma_f32_16x16x32_bf16 v[{96+4*t}:{99+4*t}], v[{132+4*t}:{135+4*t}], v[{56+4*s}:{59+4*s}], {c}")
        e("s_waitcnt lgkmcnt(0)")
        c = "v[128:131]" if s else "0"
        e(f"v_mfma_f32_16x16x32_bf16 v[128:131], v[164:167], v[{56+4*s}:{59+4*s}], {c}")
    e("v_lshlrev_b32 v4, 9, v3")
    e("v_lshl_add_u32 v4, v2, 4, v4")
    e("s_lshl_b32 s60, s52, 11")
    e(f"s_add_u32 s60, s60, {K1_QP}")
    e("v_add_u32 v4, s60, v4")
    e("v_lshlrev_b32 v5, 6, v3")
    e("v_lshl_add_u32 v5, v2, 4, v5")
    e("s_lshl_b32 s60, s52, 8")
    e(f"s_add_u32 s60, s60, {K1_GP}")
    e("v_add_u32 v5, s60, v5")
    e("v_cmp_gt_u32 vcc, 4, v3")
    e("s_and_saveexec_b64 s[72:73], vcc")
    e("s_nop 7")
    for t in range(8):
        e(f"ds_write_b128 v4, v[{96+4*t}:{99+4*t}] offset:{64*t}")
    e("ds_write_b128 v5, v[128:131]")
    e("s_mov_b64 exec, s[72:73]")
    e("s_waitcnt lgkmcnt(0)")
    e("s_barrier")
    e("v_lshrrev_b32 v4, 2, v3")
    e("v_lshlrev_b32 v4, 11, v4")
    e("v_and_b32 v5, 3, v3")
    e("v_lshl_add_u32 v4, v5, 9, v4")
    e("v_lshl_add_u32 v4, v2, 5, v4")
    e(f"v_add_u32 v4, {K1_QP}, v4")
    for s in range(4):
        e(f"ds_read_b128 v[{96+8*s}:{99+8*s}], v4 offset:{128*s}")
        e(f"ds_read_b128 v[{100+8*s}:{103+8*s}], v4 offset:{128*s+16}")
    e("s_waitcnt lgkmcnt(0)")
    for n in (4, 8):
        for r in range(32):
            e(f"v_add_f32_dpp v{96+r}, v{96+r}, v{96+r} row_shr:{n} row_mask:0xf bank_mask:0xf bound_ctrl:0")
        e("s_nop 1")
    for s in range(4):
        for i in range(4):
            e(f"v_cvt_pk_bf16_f32 v{132+4*s+i}, v{96+8*s+2*i}, v{97+8*s+2*i}")
    e("s_waitcnt vmcnt(0)")
    e("s_nop 1")
    for s in range(4):
        c = "v[148:151]" if s else "0"
        e(f"v_mfma_f32_16x16x32_bf16 v[148:151], v[{24+4*s}:{27+4*s}], v[{132+4*s}:{135+4*s}], {c}")
    e("s_lshr_b32 s60, s53, 4")
    e("s_lshl_b32 s60, s60, 4")
    e("s_lshl_b32 s61, s54, 1")
    e("s_add_u32 s60, s60, s61")
    e("s_lshr_b32 s61, s52, 1")
    e("s_add_u32 s60, s60, s61")
    e("s_lshl_b32 s60, s60, 10")
    e("s_and_b32 s61, s52, 1")
    e("s_lshl_b32 s61, s61, 9")
    e("s_add_u32 s60, s60, s61")
    e("s_and_b32 s61, s53, 15")
    e("s_lshl_b32 s61, s61, 4")
    e("s_add_u32 s60, s60, s61")
    e(f"s_add_u32 s60, s60, {WS_QA}")
    e("v_and_b32 v4, 3, v3")
    e("v_lshlrev_b32 v4, 15, v4")
    e("v_lshrrev_b32 v5, 1, v2")
    e("v_lshl_add_u32 v4, v5, 8, v4")
    e("v_and_b32 v5, 1, v2")
    e("v_lshl_add_u32 v4, v5, 3, v4")
    e("v_cmp_le_u32 vcc, 12, v3")
    e("s_nop 4")
    e("v_cvt_pk_bf16_f32 v152, v148, v149")
    e("v_cvt_pk_bf16_f32 v153, v150, v151")
    e("s_and_saveexec_b64 s[72:73], vcc")
    e("buffer_store_dwordx2 v[152:153], v4, s[48:51], s60 offen")
    e("s_mov_b64 exec, s[72:73]")
    e("s_cmp_lg_u32 s2, 0")
    e("s_cbranch_scc1 K1_NOXN")
    e("v_lshlrev_b32 v11, 4, v1")
    e("s_lshl_b32 s60, s52, 10")
    e(f"s_add_u32 s60, s60, {WS_XN}")
    e("buffer_store_dwordx4 v[52:55], v11, s[48:51], s60 offen")
    e("v_mov_b32 v57, 0")
    for i in range(4):
        e(f"v_lshlrev_b32 v58, 16, v{52+i}")
        e(f"v_lshlrev_b32 v59, 16, v{20+i}")
        e("v_fmac_f32 v57, v58, v59")
        e(f"v_and_b32 v58, 0xffff0000, v{52+i}")
        e(f"v_and_b32 v59, 0xffff0000, v{20+i}")
        e("v_fmac_f32 v57, v58, v59")
    a.wave_sum(57)
    a.rne(57, 57)
    e(f"v_mul_f32 v58, {hex(LOG2E ^ 0x80000000)}, v57")
    e("v_exp_f32 v58, v58")
    e("s_nop 0")
    e("v_add_f32 v58, 1.0, v58")
    e("v_rcp_f32 v58, v58")
    e("s_nop 0")
    a.rne(58, 58)
    e("s_lshl_b32 s60, s52, 2")
    e(f"s_add_u32 s60, s60, {WS_RS}")
    e("v_mov_b32 v59, 0")
    e("v_cmp_eq_u32 vcc, 63, v1")
    e("s_and_saveexec_b64 s[72:73], vcc")
    e("buffer_store_dword v58, v59, s[48:51], s60 offen")
    e("s_mov_b64 exec, s[72:73]")
    a.lab("K1_NOXN")
    e("s_cmp_lg_u32 s52, 3")
    e("s_cbranch_scc1 K1_END")
    e("s_cmp_eq_u32 s56, 0")
    e("s_cbranch_scc1 K1_END")
    e("v_lshrrev_b32 v4, 3, v1")
    e("v_and_b32 v5, 7, v1")
    e("v_lshlrev_b32 v6, 6, v4")
    e("v_lshl_add_u32 v6, v5, 2, v6")
    e(f"v_add_u32 v6, {K1_GP}, v6")
    e("v_cmp_gt_u32 vcc, 32, v1")
    e("s_and_saveexec_b64 s[72:73], vcc")
    for w in range(4):
        e(f"ds_read_b32 v{96+w}, v6 offset:{256*w}")
        e(f"ds_read_b32 v{100+w}, v6 offset:{256*w+32}")
    e("s_waitcnt lgkmcnt(0)")
    e("v_add_f32 v96, v96, v97")
    e("v_add_f32 v98, v98, v99")
    e("v_add_f32 v96, v96, v98")
    e("v_add_f32 v100, v100, v101")
    e("v_add_f32 v102, v102, v103")
    e("v_add_f32 v100, v100, v102")
    a.rne(96, 96)
    a.rne(100, 100)
    e(f"v_mul_f32 v97, {hex(LOG2E ^ 0x80000000)}, v96")
    e("v_exp_f32 v97, v97")
    e("s_nop 0")
    e("v_add_f32 v97, 1.0, v97")
    e("v_rcp_f32 v97, v97")
    e("s_nop 0")
    e("v_mul_f32 v96, v96, v97")
    a.rne(96, 96)
    e("v_mul_f32 v96, v96, v100")
    e("v_cvt_pk_bf16_f32 v96, v96, v96")
    e("v_mul_u32_u24 v6, 3584, v4")
    e("v_lshl_add_u32 v6, v5, 1, v6")
    e("s_lshl_b32 s60, s55, 1")
    e(f"s_add_u32 s60, s60, {WS_HH}")
    e("buffer_store_short v96, v6, s[48:51], s60 offen")
    a.lab("K1_END")
    e("s_endpgm")


K2_CKV = 0
K2_QAI = 131072
K2_PI = K2_QAI + 16384
K2_MX = K2_PI + 4096
K2_LS = K2_MX + 512
K2_LDS = K2_LS + 512


def gen_k2(a):
    head(a, 'k2_kernel')
    e = a.e
    e("s_cmp_ge_u32 s2, 256")
    e("s_cbranch_scc1 K2_END")
    e("s_load_dwordx2 s[4:5], s[0:1], 8")
    e("s_load_dwordx2 s[20:21], s[0:1], 104")
    e("v_and_b32 v1, 63, v0")
    e("v_lshrrev_b32 v4, 6, v0")
    e("v_lshrrev_b32 v2, 4, v1")
    e("v_and_b32 v3, 15, v1")
    e("v_readfirstlane_b32 s52, v4")
    e("s_and_b32 s57, s2, 7")
    e("s_lshr_b32 s58, s2, 3")
    e("s_and_b32 s53, s58, 1")
    e("s_lshr_b32 s58, s58, 1")
    e("s_lshl_b32 s57, s57, 4")
    e("s_add_u32 s58, s58, s57")
    e("s_lshr_b32 s54, s58, 5")
    e("s_and_b32 s55, s58, 31")
    e("v_lshlrev_b32 v11, 4, v1")
    e("s_waitcnt lgkmcnt(0)")
    a.srd(24, 4, 0x1000000)
    a.srd(48, 20, WS_END)
    e("s_lshl_b32 s60, s54, 1")
    e("s_add_u32 s60, s60, s53")
    e("s_lshl_b32 s60, s60, 14")
    e("s_lshl_b32 s61, s52, 11")
    e("s_add_u32 s60, s60, s61")
    e(f"s_add_u32 s60, s60, {WS_QA}")
    e(f"s_add_u32 s61, s61, {K2_QAI}")
    e("s_mov_b32 m0, s61")
    e("s_add_u32 s62, s60, 1024")
    e("buffer_load_dwordx4 v11, s[48:51], s60 offen lds")
    e("s_add_u32 m0, s61, 1024")
    e("s_lshl_b32 s60, s58, 17")
    e("buffer_load_dwordx4 v11, s[48:51], s62 offen lds")
    e("s_lshl_b32 s61, s52, 14")
    e("s_add_u32 s60, s60, s61")
    for f in range(8):
        e(f"v_xor_b32 v{12+f}, {f*32}, v11")
    for kk in range(16):
        f = (kk & 8) | ((kk & 3) << 1)
        e(f"s_add_u32 m0, s61, {kk*1024}")
        e(f"s_add_u32 s62, s60, {kk*1024}")
        e(f"buffer_load_dwordx4 v{12 + f//2}, s[24:27], s62 offen lds")
    e("v_and_b32 v4, 8, v3")
    e("v_and_b32 v5, 3, v3")
    e("v_lshl_or_b32 v4, v5, 1, v4")
    e("v_and_b32 v5, 2, v4")
    e("v_xor_b32 v5, v5, v2")
    e("v_and_b32 v4, 12, v4")
    e("v_lshlrev_b32 v6, 10, v3")
    e("v_lshl_add_u32 v6, v5, 4, v6")
    e("v_add_u32 v6, s61, v6")
    for q in range(4):
        e(f"v_xor_b32 v7, {4*q}, v4")
        e(f"v_lshl_add_u32 v{20+q}, v7, 4, v6")
    e("v_bfe_u32 v4, v1, 2, 2")
    e("v_and_b32 v5, 3, v1")
    e("v_lshl_add_u32 v6, v2, 3, v4")
    e("v_lshlrev_b32 v6, 10, v6")
    e("v_and_b32 v7, 1, v2")
    e("v_lshlrev_b32 v7, 3, v7")
    e("s_lshl_b32 s62, s52, 3")
    e("v_xor_b32 v7, s62, v7")
    e("v_lshrrev_b32 v8, 1, v5")
    e("v_add_u32 v7, v7, v8")
    e("v_lshl_add_u32 v6, v7, 4, v6")
    e("v_and_b32 v8, 1, v5")
    e("v_lshl_add_u32 v6, v8, 3, v6")
    e("v_lshlrev_b32 v4, 1, v4")
    for ct in range(4):
        e(f"v_xor_b32 v7, {2*ct}, v4")
        e(f"v_lshl_add_u32 v{24+ct}, v7, 4, v6")
        e(f"v_add_u32 v{28+ct}, 0x10000, v{24+ct}")
    e("s_waitcnt vmcnt(16)")
    e("s_barrier")
    e(f"v_add_u32 v4, {K2_QAI}, v11")
    for s in range(16):
        e(f"ds_read_b128 v[{64+4*s}:{67+4*s}], v4 offset:{1024*s}")
    e("s_waitcnt vmcnt(0)")
    for s in range(16):
        e(f"ds_read_b128 v[{128+4*s}:{131+4*s}], v{20 + (s & 3)} offset:{256*(s >> 2)}")
    for s in range(16):
        e(f"s_waitcnt lgkmcnt({15 - s})")
        c = "v[32:35]" if s else "0"
        e(f"v_mfma_f32_16x16x32_bf16 v[32:35], v[{128+4*s}:{131+4*s}], v[{64+4*s}:{67+4*s}], {c}")
    e(f"s_mov_b32 s63, {hex(SCALE)}")
    e(f"s_mov_b32 s64, {hex(LOG2E)}")
    e("s_nop 7")
    for r in range(4):
        a.rne(32 + r, 32 + r)
        e(f"v_mul_f32 v{32+r}, s63, v{32+r}")
        a.rne(32 + r, 32 + r)
    e("v_max_f32 v36, v32, v33")
    e("v_max3_f32 v36, v36, v34, v35")
    e("v_mov_b32 v37, v36")
    e("s_nop 1")
    e("v_permlane32_swap_b32 v36, v37")
    e("s_nop 1")
    e("v_max_f32 v36, v36, v37")
    e("v_mov_b32 v37, v36")
    e("s_nop 1")
    e("v_permlane16_swap_b32 v36, v37")
    e("s_nop 1")
    e("v_max_f32 v36, v36, v37")
    e("v_lshlrev_b32 v38, 5, v3")
    e("s_lshl_b32 s62, s52, 2")
    e(f"s_add_u32 s62, s62, {K2_MX}")
    e("v_add_u32 v39, s62, v38")
    e("ds_write_b32 v39, v36")
    e("s_waitcnt lgkmcnt(0)")
    e("s_barrier")
    e(f"v_add_u32 v39, {K2_MX}, v38")
    e("ds_read_b128 v[40:43], v39")
    e("ds_read_b128 v[44:47], v39 offset:16")
    e("s_waitcnt lgkmcnt(0)")
    e("v_max3_f32 v40, v40, v41, v42")
    e("v_max3_f32 v44, v44, v45, v46")
    e("v_max3_f32 v40, v40, v43, v47")
    e("v_max_f32 v40, v40, v44")
    for r in range(4):
        e(f"v_sub_f32 v{32+r}, v{32+r}, v40")
        e(f"v_mul_f32 v{32+r}, s64, v{32+r}")
        e(f"v_exp_f32 v{32+r}, v{32+r}")
    e("s_nop 0")
    e("v_add_f32 v36, v32, v33")
    e("v_add_f32 v37, v34, v35")
    e("v_add_f32 v36, v36, v37")
    e("v_cvt_pk_bf16_f32 v42, v32, v33")
    e("v_cvt_pk_bf16_f32 v43, v34, v35")
    e("v_mov_b32 v37, v36")
    e("s_nop 1")
    e("v_permlane32_swap_b32 v36, v37")
    e("s_nop 1")
    e("v_add_f32 v36, v36, v37")
    e("v_mov_b32 v37, v36")
    e("s_nop 1")
    e("v_permlane16_swap_b32 v36, v37")
    e("s_nop 1")
    e("v_add_f32 v36, v36, v37")
    e("s_lshl_b32 s62, s52, 9")
    e(f"s_add_u32 s62, s62, {K2_PI}")
    e("v_lshrrev_b32 v44, 1, v2")
    e("v_lshlrev_b32 v44, 8, v44")
    e("v_lshl_add_u32 v44, v3, 4, v44")
    e("v_and_b32 v45, 1, v2")
    e("v_lshl_add_u32 v44, v45, 3, v44")
    e("v_add_u32 v44, s62, v44")
    e("ds_write_b64 v44, v[42:43]")
    e("s_lshl_b32 s62, s52, 2")
    e(f"s_add_u32 s62, s62, {K2_LS}")
    e("v_add_u32 v39, s62, v38")
    e("ds_write_b32 v39, v36")
    e("s_waitcnt lgkmcnt(0)")
    e("s_barrier")
    e(f"v_add_u32 v4, {K2_PI}, v11")
    for ks in range(4):
        e(f"ds_read_b128 v[{48+4*ks}:{51+4*ks}], v4 offset:{1024*ks}")
    n = 0
    for ks in range(4):
        for ct in range(4):
            base = (24 if ks < 2 else 28) + ct
            off = (ks & 1) * 32768
            r = 128 + 4 * (4 * ks + ct)
            e(f"ds_read_b64_tr_b16 v[{r}:{r+1}], v{base} offset:{off}")
            e(f"ds_read_b64_tr_b16 v[{r+2}:{r+3}], v{base} offset:{off+4096}")
    e("s_waitcnt lgkmcnt(15)")
    for ks in range(4):
        for ct in range(4):
            i = 4 * ks + ct
            rem = 32 - 2 * (i + 1)
            e(f"s_waitcnt lgkmcnt({min(rem, 15)})")
            r = 128 + 4 * i
            c = f"v[{64+4*ct}:{67+4*ct}]" if ks else "0"
            e(f"v_mfma_f32_16x16x32_bf16 v[{64+4*ct}:{67+4*ct}], v[{r}:{r+3}], v[{48+4*ks}:{51+4*ks}], {c}")
    e("s_lshl_b32 s60, s53, 21")
    e("s_lshl_b32 s61, s58, 10")
    e("s_add_u32 s60, s60, s61")
    e("s_lshl_b32 s61, s52, 7")
    e("s_add_u32 s60, s60, s61")
    e(f"s_add_u32 s60, s60, {WS_PART}")
    e("v_lshlrev_b32 v4, 17, v3")
    e("v_lshl_add_u32 v4, v2, 3, v4")
    e("s_nop 4")
    for ct in range(4):
        e(f"v_cvt_pk_bf16_f32 v{80+2*ct}, v{64+4*ct}, v{65+4*ct}")
        e(f"v_cvt_pk_bf16_f32 v{81+2*ct}, v{66+4*ct}, v{67+4*ct}")
        e(f"buffer_store_dwordx2 v[{80+2*ct}:{81+2*ct}], v4, s[48:51], s60 offen offset:{32*ct}")
    e("s_cmp_lg_u32 s52, 0")
    e("s_cbranch_scc1 K2_END")
    e(f"v_add_u32 v39, {K2_LS}, v38")
    e("ds_read_b128 v[88:91], v39")
    e("ds_read_b128 v[92:95], v39 offset:16")
    e("s_waitcnt lgkmcnt(0)")
    e("v_add_f32 v88, v88, v89")
    e("v_add_f32 v90, v90, v91")
    e("v_add_f32 v92, v92, v93")
    e("v_add_f32 v94, v94, v95")
    e("v_add_f32 v88, v88, v90")
    e("v_add_f32 v92, v92, v94")
    e("v_add_f32 v41, v88, v92")
    e("s_lshl_b32 s60, s53, 14")
    e("s_lshl_b32 s61, s58, 3")
    e("s_add_u32 s60, s60, s61")
    e(f"s_add_u32 s60, s60, {WS_ML}")
    e("v_lshlrev_b32 v4, 10, v3")
    e("v_cmp_gt_u32 vcc, 16, v1")
    e("s_and_saveexec_b64 s[72:73], vcc")
    e("buffer_store_dwordx2 v[40:41], v4, s[48:51], s60 offen")
    a.lab("K2_END")
    e("s_endpgm")


K3_UV = 0
K3_WO = 16384
K3_SC = 32768
K3_CT = K3_SC + 512
K3_LDS = K3_CT + 512


def gen_k3(a):
    head(a, 'k3_kernel')
    e = a.e
    e("s_cmp_ge_u32 s2, 368")
    e("s_cbranch_scc1 K3_END")
    e("s_load_dwordx4 s[8:11], s[0:1], 32")
    e("s_load_dwordx2 s[12:13], s[0:1], 80")
    e("s_load_dwordx2 s[20:21], s[0:1], 104")
    e("v_and_b32 v1, 63, v0")
    e("v_lshrrev_b32 v4, 6, v0")
    e("v_lshrrev_b32 v2, 4, v1")
    e("v_and_b32 v3, 15, v1")
    e("v_readfirstlane_b32 s52, v4")
    e("v_lshlrev_b32 v11, 4, v1")
    e("s_waitcnt lgkmcnt(0)")
    a.srd(48, 20, WS_END)
    e("s_cmp_ge_u32 s2, 256")
    e("s_cbranch_scc1 K3_DOWN")
    a.srd(24, 8, 0x400000)
    a.srd(28, 10, 0x400000)
    e("s_and_b32 s57, s2, 7")
    e("s_lshr_b32 s58, s2, 3")
    e("s_and_b32 s59, s58, 3")
    e("s_lshl_b32 s53, s57, 2")
    e("s_add_u32 s53, s53, s59")
    e("s_lshr_b32 s54, s58, 2")
    e("s_lshl_b32 s60, s53, 2")
    e("s_add_u32 s60, s60, s52")
    e("s_lshl_b32 s61, s60, 8")
    e(f"s_add_u32 s61, s61, {WS_ML}")
    e("v_and_b32 v4, 31, v1")
    e("v_lshlrev_b32 v4, 3, v4")
    e("buffer_load_dwordx2 v[16:17], v4, s[48:51], s61 offen")
    e("v_lshrrev_b32 v4, 1, v1")
    e("v_lshlrev_b32 v4, 13, v4")
    e("v_and_b32 v5, 1, v1")
    e("v_lshl_add_u32 v4, v5, 4, v4")
    e("s_lshl_b32 s61, s52, 20")
    e("s_lshl_b32 s62, s53, 8")
    e("s_add_u32 s61, s61, s62")
    e("s_lshl_b32 s62, s54, 5")
    e("s_add_u32 s61, s61, s62")
    e("s_lshl_b32 s62, s52, 12")
    for u in range(4):
        e(f"s_add_u32 m0, s62, {K3_UV + u*1024}")
        e(f"s_add_u32 s63, s61, {u*32*8192}")
        e("buffer_load_dwordx4 v4, s[24:27], s63 offen lds")
    e("s_lshl_b32 s61, s53, 7")
    e("s_lshl_b32 s62, s54, 4")
    e("s_add_u32 s61, s61, s62")
    e("s_lshl_b32 s62, s52, 2")
    e("s_add_u32 s61, s61, s62")
    e("s_lshl_b32 s61, s61, 10")
    e("s_mov_b32 s30, 0x400000")
    e("s_branch K3_WODMA")
    a.lab("K3_DOWN")
    a.srd(28, 12, 1792 * 1024)
    e("s_sub_u32 s53, s2, 256")
    e("s_lshl_b32 s61, s53, 4")
    e("s_lshl_b32 s62, s52, 2")
    e("s_add_u32 s61, s61, s62")
    e("s_lshl_b32 s61, s61, 10")
    a.lab("K3_WODMA")
    e("s_and_b32 s63, s52, 1")
    e("s_lshl_b32 s63, s63, 7")
    e("s_lshl_b32 s62, s52, 12")
    for u in range(4):
        e(f"s_add_u32 s64, s63, {u*32}")
        e("v_xor_b32 v5, s64, v11")
        e(f"s_add_u32 m0, s62, {K3_WO + u*1024}")
        e(f"s_add_u32 s65, s61, {u*1024}")
        e("buffer_load_dwordx4 v5, s[28:31], s65 offen lds")
    e("s_cmp_ge_u32 s2, 256")
    e("s_cbranch_scc1 K3_DOWN2")
    e("s_lshl_b32 s61, s60, 15")
    e(f"s_add_u32 s61, s61, {WS_PART}")
    e("s_add_u32 s62, s61, 16384")
    e("v_lshlrev_b32 v4, 10, v3")
    e("v_lshl_add_u32 v4, v2, 4, v4")
    for s in range(16):
        e(f"buffer_load_dwordx4 v[{64+8*s}:{67+8*s}], v4, s[48:51], s61 offen offset:{64*s}")
        e(f"buffer_load_dwordx4 v[{68+8*s}:{71+8*s}], v4, s[48:51], s62 offen offset:{64*s}")
    e("s_waitcnt vmcnt(40)")
    e("v_mov_b32 v18, v16")
    for n in (1, 2, 4, 8):
        e("s_nop 1")
        e(f"v_max_f32_dpp v18, v18, v18 row_shr:{n} row_mask:0xf bank_mask:0xf")
    e("s_nop 1")
    e("v_readlane_b32 s64, v18, 15")
    e("v_readlane_b32 s65, v18, 31")
    e("s_nop 3")
    e("v_mov_b32 v18, s64")
    e("v_max_f32 v18, s65, v18")
    e("v_sub_f32 v19, v16, v18")
    e(f"v_mul_f32 v19, {hex(LOG2E)}, v19")
    e("v_exp_f32 v19, v19")
    e("s_nop 0")
    e("v_mul_f32 v20, v19, v17")
    for n in (1, 2, 4, 8):
        e("s_nop 1")
        e(f"v_add_f32_dpp v20, v20, v20 row_shr:{n} row_mask:0xf bank_mask:0xf bound_ctrl:0")
    e("s_nop 1")
    e("v_readlane_b32 s64, v20, 15")
    e("v_readlane_b32 s65, v20, 31")
    e("s_nop 3")
    e("v_mov_b32 v20, s64")
    e("v_add_f32 v20, s65, v20")
    e("v_rcp_f32 v20, v20")
    e("s_nop 0")
    e("v_mul_f32 v19, v19, v20")
    e("v_and_b32 v4, 31, v1")
    e("v_lshlrev_b32 v4, 2, v4")
    e("s_lshl_b32 s64, s52, 7")
    e(f"s_add_u32 s64, s64, {K3_SC}")
    e("v_add_u32 v4, s64, v4")
    e("ds_write_b32 v4, v19")
    e("v_lshlrev_b32 v4, 4, v2")
    e("v_add_u32 v4, s64, v4")
    e("s_waitcnt lgkmcnt(0)")
    e("ds_read_b128 v[24:27], v4")
    e("ds_read_b128 v[28:31], v4 offset:64")
    e("s_waitcnt vmcnt(32)")
    e("s_barrier")
    e("v_bfe_u32 v4, v1, 2, 2")
    e("v_lshl_add_u32 v4, v2, 3, v4")
    e("v_lshlrev_b32 v4, 5, v4")
    e("v_and_b32 v5, 3, v1")
    e("v_lshl_add_u32 v4, v5, 3, v4")
    for s in range(16):
        e(f"ds_read_b64_tr_b16 v[{192+4*s}:{193+4*s}], v4 offset:{K3_UV + 1024*s}")
        e(f"ds_read_b64_tr_b16 v[{194+4*s}:{195+4*s}], v4 offset:{K3_UV + 1024*s+128}")
    e("s_waitcnt lgkmcnt(0)")
    for s in range(16):
        e(f"s_waitcnt vmcnt({30 - 2*s})")
        c0 = "v[32:35]" if s else "0"
        c1 = "v[36:39]" if s else "0"
        e(f"v_mfma_f32_16x16x32_bf16 v[32:35], v[{64+8*s}:{67+8*s}], v[{192+4*s}:{195+4*s}], {c0}")
        e(f"v_mfma_f32_16x16x32_bf16 v[36:39], v[{68+8*s}:{71+8*s}], v[{192+4*s}:{195+4*s}], {c1}")
    e("s_nop 7")
    e("s_nop 1")
    e("v_mul_f32 v40, v32, v24")
    for r in range(1, 4):
        e(f"v_fmac_f32 v40, v{32+r}, v{24+r}")
    for r in range(4):
        e(f"v_fmac_f32 v40, v{36+r}, v{28+r}")
    e("v_mov_b32 v41, v40")
    e("s_nop 1")
    e("v_permlane32_swap_b32 v40, v41")
    e("s_nop 1")
    e("v_add_f32 v40, v40, v41")
    e("v_mov_b32 v41, v40")
    e("s_nop 1")
    e("v_permlane16_swap_b32 v40, v41")
    e("s_nop 1")
    e("v_add_f32 v40, v40, v41")
    e("v_cvt_pk_bf16_f32 v40, v40, v40")
    e("s_lshl_b32 s64, s52, 5")
    e(f"s_add_u32 s64, s64, {K3_CT}")
    e("v_lshl_add_u32 v4, v3, 1, s64")
    e("ds_write_b16 v4, v40")
    e("s_branch K3_GEMV")
    a.lab("K3_DOWN2")
    e("s_mul_i32 s64, s52, 3584")
    e("s_lshl_b32 s65, s53, 5")
    e("s_add_u32 s64, s64, s65")
    e(f"s_add_u32 s64, s64, {WS_HH}")
    e("v_lshlrev_b32 v4, 1, v3")
    e("buffer_load_ushort v40, v4, s[48:51], s64 offen")
    e("s_lshl_b32 s64, s52, 5")
    e(f"s_add_u32 s64, s64, {K3_CT}")
    e("v_add_u32 v4, s64, v4")
    e("s_waitcnt vmcnt(0)")
    e("ds_write_b16 v4, v40")
    a.lab("K3_GEMV")
    e("s_waitcnt vmcnt(0) lgkmcnt(0)")
    e("s_barrier")
    e("v_and_b32 v4, 3, v3")
    e("v_lshlrev_b32 v4, 5, v4")
    e("v_lshl_add_u32 v4, v2, 3, v4")
    e(f"v_add_u32 v4, {K3_CT}, v4")
    e("ds_read_b64 v[42:43], v4")
    e("v_bfe_u32 v4, v1, 2, 2")
    e("v_lshl_add_u32 v4, v2, 2, v4")
    e("v_and_b32 v5, 7, v4")
    e("v_lshlrev_b32 v4, 10, v4")
    e("v_and_b32 v6, 3, v1")
    e("v_lshl_add_u32 v4, v6, 3, v4")
    e("s_lshl_b32 s64, s52, 8")
    e(f"s_add_u32 s64, s64, {K3_WO}")
    e("v_add_u32 v4, s64, v4")
    for t in range(8):
        e(f"v_xor_b32 v6, {t}, v5")
        e(f"v_lshl_add_u32 v6, v6, 5, v4")
        e(f"ds_read_b64_tr_b16 v[{44+2*t}:{45+2*t}], v6")
    e("s_waitcnt lgkmcnt(0)")
    for t in range(8):
        e(f"v_mfma_f32_16x16x16_bf16 v[{64+4*t}:{67+4*t}], v[{44+2*t}:{45+2*t}], v[42:43], 0")
    e("s_lshl_b32 s64, s2, 13")
    e("s_lshl_b32 s65, s52, 9")
    e("s_add_u32 s64, s64, s65")
    e(f"s_add_u32 s64, s64, {WS_SP}")
    e("v_lshlrev_b32 v4, 11, v3")
    e("v_lshl_add_u32 v4, v2, 4, v4")
    e("v_cmp_gt_u32 vcc, 4, v3")
    e("s_and_saveexec_b64 s[72:73], vcc")
    e("s_nop 7")
    for t in range(8):
        e(f"buffer_store_dwordx4 v[{64+4*t}:{67+4*t}], v4, s[48:51], s64 offen offset:{64*t}")
    a.lab("K3_END")
    e("s_endpgm")


K4_LDS = 1024


def gen_k4(a):
    head(a, 'k4_kernel')
    e = a.e
    e("s_cmp_ge_u32 s2, 64")
    e("s_cbranch_scc1 K4_END")
    e("s_load_dwordx2 s[4:5], s[0:1], 0")
    e("s_load_dwordx2 s[8:9], s[0:1], 88")
    e("s_load_dwordx2 s[20:21], s[0:1], 104")
    e("v_and_b32 v1, 63, v0")
    e("v_lshrrev_b32 v4, 6, v0")
    e("s_nop 1")
    e("v_readfirstlane_b32 s52, v4")
    e("s_lshr_b32 s53, s2, 4")
    e("s_and_b32 s54, s2, 15")
    e("v_lshrrev_b32 v2, 3, v0")
    e("v_and_b32 v3, 7, v0")
    e("v_lshlrev_b32 v4, 13, v2")
    e("v_lshl_add_u32 v4, v3, 4, v4")
    e("s_lshl_b32 s60, s53, 11")
    e("s_lshl_b32 s61, s54, 7")
    e("s_add_u32 s60, s60, s61")
    e(f"s_add_u32 s60, s60, {WS_SP}")
    e("s_waitcnt lgkmcnt(0)")
    a.srd(24, 4, 4096)
    a.srd(28, 8, 4096)
    a.srd(48, 20, WS_END)
    for i in range(12):
        e(f"s_add_u32 s61, s60, {i*32*8192}")
        e(f"buffer_load_dwordx4 v[{16+4*i}:{19+4*i}], v4, s[48:51], s61 offen")
    e("s_lshl_b32 s61, s53, 10")
    e("s_lshl_b32 s62, s54, 6")
    e("s_add_u32 s61, s61, s62")
    e("v_and_b32 v5, 31, v1")
    e("v_lshlrev_b32 v5, 1, v5")
    e("buffer_load_ushort v70, v5, s[24:27], s61 offen")
    e(f"s_add_u32 s62, s61, {WS_XN}")
    e("buffer_load_ushort v71, v5, s[48:51], s62 offen")
    e("s_lshl_b32 s62, s53, 2")
    e(f"s_add_u32 s62, s62, {WS_RS}")
    e("v_mov_b32 v6, 0")
    e("buffer_load_dword v72, v6, s[48:51], s62 offen")
    e("s_waitcnt vmcnt(3)")
    for i in range(1, 8):
        for c in range(4):
            e(f"v_add_f32 v{16+c}, v{16+c}, v{16+4*i+c}")
    for i in range(9, 12):
        for c in range(4):
            e(f"v_add_f32 v{48+c}, v{48+c}, v{16+4*i+c}")
    for c in range(4):
        e(f"v_mov_b32 v{20+c}, v{48+c}")
    e("s_nop 1")
    for c in range(8):
        e(f"v_add_f32_dpp v{16+c}, v{16+c}, v{16+c} row_shr:8 row_mask:0xf bank_mask:0xf bound_ctrl:0")
    for c in range(8):
        e(f"v_mov_b32 v{24+c}, v{16+c}")
    e("s_nop 1")
    for c in range(8):
        e(f"v_permlane32_swap_b32 v{16+c}, v{24+c}")
    e("s_nop 1")
    for c in range(8):
        e(f"v_add_f32 v{16+c}, v{16+c}, v{24+c}")
    for c in range(8):
        e(f"v_mov_b32 v{24+c}, v{16+c}")
    e("s_nop 1")
    for c in range(8):
        e(f"v_permlane16_swap_b32 v{16+c}, v{24+c}")
    e("s_nop 1")
    for c in range(8):
        e(f"v_add_f32 v{16+c}, v{16+c}, v{24+c}")
    e("s_lshl_b32 s62, s52, 8")
    e("v_lshl_add_u32 v6, v3, 4, s62")
    e("v_and_b32 v7, 56, v1")
    e("v_cmp_eq_u32 vcc, 8, v7")
    e("s_and_saveexec_b64 s[72:73], vcc")
    e("ds_write_b128 v6, v[16:19]")
    e("ds_write_b128 v6, v[20:23] offset:128")
    e("s_mov_b64 exec, s[72:73]")
    e("s_waitcnt lgkmcnt(0)")
    e("s_barrier")
    e("s_cmp_lg_u32 s52, 0")
    e("s_cbranch_scc1 K4_END")
    e("v_lshlrev_b32 v6, 1, v5")
    for w in range(4):
        e(f"ds_read_b32 v{16+w}, v6 offset:{256*w}")
        e(f"ds_read_b32 v{20+w}, v6 offset:{256*w+128}")
    e("s_waitcnt vmcnt(0) lgkmcnt(0)")
    e("v_add_f32 v16, v16, v17")
    e("v_add_f32 v18, v18, v19")
    e("v_add_f32 v16, v16, v18")
    e("v_add_f32 v20, v20, v21")
    e("v_add_f32 v22, v22, v23")
    e("v_add_f32 v20, v20, v22")
    a.rne(16, 16)
    a.rne(20, 20)
    e("v_mul_f32 v20, v20, v72")
    a.rne(20, 20)
    e("v_lshlrev_b32 v71, 16, v71")
    e("v_lshlrev_b32 v70, 16, v70")
    e("v_add_f32 v20, v71, v20")
    a.rne(20, 20)
    e(f"v_mul_f32 v21, {hex(LOG2E ^ 0x80000000)}, v20")
    e("v_exp_f32 v21, v21")
    e("s_nop 0")
    e("v_add_f32 v21, 1.0, v21")
    e("v_rcp_f32 v21, v21")
    e("s_nop 0")
    e("v_mul_f32 v20, v20, v21")
    a.rne(20, 20)
    e("v_mul_f32 v16, v16, v20")
    a.rne(16, 16)
    e("v_add_f32 v16, v70, v16")
    e("v_cvt_pk_bf16_f32 v16, v16, v16")
    e("v_cmp_gt_u32 vcc, 32, v1")
    e("s_and_saveexec_b64 s[72:73], vcc")
    e("buffer_store_short v16, v5, s[28:31], s61 offen")
    a.lab("K4_END")
    e("s_endpgm")


def build(extra_dummy=0):
    hdr = open(REF).read().split('; Override')[0]
    s = hdr
    s += f"; @launch kernel=k1_kernel grid=(256,1,1) block=(256,1,1) lds={K1_LDS}\n"
    s += f"; @launch kernel=k2_kernel grid=(256,1,1) block=(512,1,1) lds={K2_LDS}\n"
    s += f"; @launch kernel=k3_kernel grid=(368,1,1) block=(256,1,1) lds={K3_LDS}\n"
    s += f"; @launch kernel=k4_kernel grid=(64,1,1) block=(256,1,1) lds={K4_LDS}\n"
    for i in range(extra_dummy):
        s += f"; @launch kernel=kd_kernel grid=(256,1,1) block=(256,1,1) lds=0\n"
    s += '.amdgcn_target "amdgcn-amd-amdhsa--gfx950"\n.text\n'
    a = A()
    gen_k1(a)
    gen_k2(a)
    gen_k3(a)
    gen_k4(a)
    if extra_dummy:
        head(a, 'kd_kernel')
        a.e("s_endpgm")
    s += a.text()
    s += '.section .rodata,"a"\n'
    s += kd('k1_kernel', 168) + kd('k2_kernel', 192) + kd('k3_kernel', 256) + kd('k4_kernel', 80)
    if extra_dummy:
        s += kd('kd_kernel', 8)
    return s


if __name__ == '__main__':
    out = sys.argv[1]
    nd = int(sys.argv[2]) if len(sys.argv) > 2 else 0
    open(out, 'w').write(build(nd))
```

```python
import sys

REF = 'recurrent_scan__compressed_kv_cla__moe_arch_mod__decode.s.ref'

WS_QA = 0x000000
WS_HH = 0x020000
WS_XN = 0x024000
WS_RS = 0x025000
WS_ML = 0x026000
WS_PART = 0x030000
WS_SP = 0x430000
WS_END = WS_SP + 512 * 8192
WS_GUP = WS_END
WS_UVT = WS_GUP + 16*4*3584*4
WS_END2 = WS_UVT + 0x400000

LOG2E = 0x3fb8aa3b
SCALE = 0x3db504f3
EPS = 0x3727c5ac


STAMP = False

class A:
    def __init__(self):
        self.l = []

    def e(self, s):
        for line in s.strip().split('\n'):
            line = line.strip()
            if line:
                self.l.append('    ' + line)

    def lab(self, s):
        self.l.append(s + ':')

    def srd(self, d, base, nbytes):
        self.e(f"s_mov_b32 s{d}, s{base}")
        self.e(f"s_and_b32 s{d+1}, s{base+1}, 0xffff")
        self.e(f"s_mov_b32 s{d+2}, {hex(nbytes)}")
        self.e(f"s_mov_b32 s{d+3}, 0x00020000")

    def wave_sum(self, v):
        for n in (1, 2, 4, 8):
            self.e("s_nop 1")
            self.e(f"v_add_f32_dpp v{v}, v{v}, v{v} row_shr:{n} row_mask:0xf bank_mask:0xf bound_ctrl:0")
        self.e("s_nop 1")
        self.e(f"v_add_f32_dpp v{v}, v{v}, v{v} row_bcast:15 row_mask:0xa bank_mask:0xf")
        self.e("s_nop 1")
        self.e(f"v_add_f32_dpp v{v}, v{v}, v{v} row_bcast:31 row_mask:0xc bank_mask:0xf")

    def rne(self, d, s):
        self.e(f"v_cvt_pk_bf16_f32 v{d}, v{s}, v{s}")
        self.e(f"v_and_b32 v{d}, 0xffff0000, v{d}")

    nst = 0
    def stamp(self):
        if not STAMP: return
        self.e(f"s_memtime s[{76+2*self.nst}:{77+2*self.nst}]")
        self.nst += 1

    def stamp_out(self, kidx):
        if not STAMP: return
        n = self.nst; self.nst = 0
        self.e("s_mov_b64 exec, -1")
        self.e("s_waitcnt lgkmcnt(0)")
        self.e(f"s_add_u32 s74, s2, {kidx*512}")
        self.e("s_lshl_b32 s74, s74, 4")
        self.e("s_add_u32 s74, s74, s52")
        self.e("s_lshl_b32 s74, s74, 7")
        self.e("s_add_u32 s74, s74, 0x2000000")
        self.e("s_mov_b32 s50, 0x10000000")
        self.e("v_mov_b32 v1, 0")
        for i in range(n):
            self.e(f"v_mov_b32 v2, s{76+2*i}")
            self.e(f"buffer_store_dword v2, v1, s[48:51], s74 offen offset:{4*i}")

    def text(self):
        return '\n'.join(self.l) + '\n'


def kd(name, vgpr, sgpr=96):
    acc = (vgpr + 3) // 4 * 4
    return f""".p2align 6
.amdhsa_kernel {name}
  .amdhsa_next_free_vgpr {vgpr}
  .amdhsa_next_free_sgpr {sgpr}
  .amdhsa_accum_offset {acc}
  .amdhsa_group_segment_fixed_size 0
  .amdhsa_kernarg_size 112
  .amdhsa_user_sgpr_count 2
  .amdhsa_user_sgpr_kernarg_segment_ptr 1
  .amdhsa_system_sgpr_workgroup_id_x 1
.end_amdhsa_kernel
"""


def head(a, name):
    a.l.append(f".globl {name}\n.p2align 8\n.type {name},@function\n{name}:")


NLOG2E = LOG2E ^ 0x80000000
FL = set(sys.argv[2:])

def lanes(e):
    e("v_and_b32 v1, 63, v0")
    e("v_lshrrev_b32 v4, 6, v0")
    e("v_lshrrev_b32 v2, 4, v1")
    e("v_and_b32 v3, 15, v1")
    e("v_readfirstlane_b32 s52, v4")
    e("v_lshlrev_b32 v11, 4, v1")

def xreduce_rows(a, v, t, op):
    e = a.e
    e(f"v_mov_b32 v{t}, v{v}")
    e("s_nop 1")
    e(f"v_permlane32_swap_b32 v{v}, v{t}")
    e("s_nop 1")
    e(f"{op} v{v}, v{v}, v{t}")
    e(f"v_mov_b32 v{t}, v{v}")
    e("s_nop 1")
    e(f"v_permlane16_swap_b32 v{v}, v{t}")
    e("s_nop 1")
    e(f"{op} v{v}, v{v}, v{t}")

K1_GU = 131072
K1_XN = 147456
K1_QP = K1_XN + 4096
K1_LDS = K1_QP + 4096

def gen_k1(a):
    head(a, 'k1_kernel')
    e = a.e
    e("s_cmp_ge_u32 s2, 256")
    e("s_cbranch_scc1 K1_END")
    a.stamp()
    e("s_load_dwordx2 s[4:5], s[0:1], 0")
    e("s_load_dwordx4 s[8:11], s[0:1], 16")
    e("s_load_dwordx2 s[12:13], s[0:1], 56")
    e("s_load_dwordx4 s[16:19], s[0:1], 64")
    e("s_load_dwordx2 s[20:21], s[0:1], 104")
    e("s_load_dwordx2 s[22:23], s[0:1], 32")
    lanes(e)
    e("s_and_b32 s57, s2, 7")
    e("s_lshr_b32 s58, s2, 3")
    e("s_and_b32 s59, s58, 3")
    e("s_lshl_b32 s53, s57, 2")
    e("s_add_u32 s53, s53, s59")
    e("s_lshr_b32 s54, s2, 5")
    e("s_mov_b32 s56, 1")
    e("s_mov_b32 s59, s2")
    e("s_cmp_lt_u32 s2, 224")
    e("s_cbranch_scc1 K1_LGOK")
    e("s_mov_b32 s56, 0")
    e("s_sub_u32 s59, s2, 224")
    a.lab("K1_LGOK")
    e("s_mul_i32 s60, s59, 2341")
    e("s_lshr_b32 s55, s60, 16")
    e("s_mul_i32 s60, s55, 28")
    e("s_sub_u32 s66, s59, s60")
    e("v_lshrrev_b32 v5, 1, v3")
    e("v_sub_u32 v6, v5, v2")
    e("v_and_b32 v7, 7, v6")
    e("v_subrev_u32 v6, 4, v6")
    e("v_and_b32 v8, 7, v6")
    e("v_and_b32 v9, 1, v3")
    e("v_lshlrev_b32 v10, 13, v2")
    e("v_lshl_or_b32 v7, v7, 1, v9")
    e("v_lshl_or_b32 v8, v8, 1, v9")
    e("v_lshl_add_u32 v7, v7, 4, v10")
    e("v_lshl_add_u32 v8, v8, 4, v10")
    e("v_lshrrev_b32 v12, 3, v1")
    e("v_mul_u32_u24 v12, 3584, v12")
    e("v_and_b32 v15, 7, v1")
    e("v_lshl_add_u32 v12, v15, 4, v12")
    e("v_lshl_add_u32 v13, v3, 4, v10")
    e("s_waitcnt lgkmcnt(0)")
    a.srd(24, 4, 4096)
    a.srd(28, 8, 0x400000)
    a.srd(32, 10, 0x400000)
    a.srd(36, 12, 1024)
    a.srd(40, 16, 512 * 3584)
    a.srd(44, 18, 512 * 3584)
    a.srd(48, 20, WS_END2)
    a.srd(92, 22, 0x400000)
    e("s_lshl_b32 s62, s53, 8")
    e("s_cmp_ge_u32 s52, 4")
    e("s_cbranch_scc1 K1_NOX")
    e("s_lshl_b32 s60, s52, 10")
    e("buffer_load_dwordx4 v[16:19], v11, s[24:27], s60 offen")
    e("buffer_load_dwordx4 v[20:23], v11, s[36:39], 0 offen")
    e("s_lshl_b32 s61, s55, 1")
    e("s_and_b32 s64, s52, 1")
    e("s_add_u32 s61, s61, s64")
    e("s_mul_i32 s61, s61, 32*3584")
    e("s_lshl_b32 s64, s66, 7")
    e("s_add_u32 s61, s61, s64")
    e("s_lshl_b32 s64, s52, 12")
    e("s_cmp_ge_u32 s52, 2")
    e("s_cbranch_scc1 K1_UPDMA")
    for u in range(4):
        e(f"s_add_u32 m0, s64, {K1_GU + u*1024}")
        e(f"s_add_u32 s65, s61, {u*8*3584}")
        e("buffer_load_dwordx4 v12, s[40:43], s65 offen nt lds")
    e("s_branch K1_GUDONE")
    a.lab("K1_UPDMA")
    for u in range(4):
        e(f"s_add_u32 m0, s64, {K1_GU + u*1024}")
        e(f"s_add_u32 s65, s61, {u*8*3584}")
        e("buffer_load_dwordx4 v12, s[44:47], s65 offen nt lds")
    a.lab("K1_GUDONE")
    e("s_lshl_b32 s61, s54, 6")
    e("s_lshl_b32 s64, s52, 4")
    e("s_add_u32 s61, s61, s64")
    e("s_lshl_b32 s61, s61, 13")
    e("s_add_u32 s61, s61, s62")
    for u in range(4):
        e(f"s_add_u32 s64, s61, {u*4*8192}")
        e(f"buffer_load_dwordx4 v[{24+4*u}:{27+4*u}], v13, s[32:35], s64 offen nt")
        e(f"buffer_load_dwordx4 v[{112+4*u}:{115+4*u}], v13, s[92:95], s64 offen nt")
    a.lab("K1_NOX")
    e("s_lshl_b32 s68, s54, 1")
    e("s_add_u32 s68, s68, s52")
    e("s_and_b32 s68, s68, 15")
    e("s_lshl_b32 s61, s68, 18")
    e("s_add_u32 s61, s61, s62")
    e("s_lshl_b32 s63, s68, 13")
    for t in range(8):
        e(f"s_add_u32 m0, s63, {t*1024}")
        e(f"s_add_u32 s64, s61, {t*32768}")
        e(f"buffer_load_dwordx4 v{7 + ((t >> 1) & 1)}, s[28:31], s64 offen nt lds")
    e("s_cmp_ge_u32 s52, 4")
    e("s_cbranch_scc1 K1_LNDONE")
    a.stamp()
    e("s_waitcnt vmcnt(20)")
    for i in range(4):
        e(f"v_lshlrev_b32 v{40+2*i}, 16, v{16+i}")
        e(f"v_and_b32 v{41+2*i}, 0xffff0000, v{16+i}")
    e("v_add_f32 v48, v40, v41")
    e("v_add_f32 v49, v42, v43")
    e("v_add_f32 v50, v44, v45")
    e("v_add_f32 v51, v46, v47")
    e("v_add_f32 v48, v48, v49")
    e("v_add_f32 v50, v50, v51")
    e("v_add_f32 v48, v48, v50")
    a.wave_sum(48)
    e("s_nop 1")
    e("v_readlane_b32 s70, v48, 63")
    e("v_mov_b32 v49, 0x3b000000")
    e("s_nop 1")
    e("v_mul_f32 v49, s70, v49")
    e("v_mov_b32 v50, 0")
    for i in range(8):
        e(f"v_sub_f32 v51, v{40+i}, v49")
        e("v_fmac_f32 v50, v51, v51")
    a.wave_sum(50)
    e("s_nop 1")
    e("v_readlane_b32 s71, v50, 63")
    e("v_mov_b32 v50, 0x3b000000")
    e("s_nop 1")
    e("v_mul_f32 v50, s71, v50")
    a.rne(49, 49)
    a.rne(50, 50)
    e(f"v_add_f32 v50, {hex(EPS)}, v50")
    a.rne(50, 50)
    e("v_sqrt_f32 v50, v50")
    e("s_nop 0")
    a.rne(50, 50)
    e("v_rcp_f32 v51, v50")
    e("s_nop 0")
    for i in range(8):
        r = 40 + i
        e(f"v_sub_f32 v{r}, v{r}, v49")
        a.rne(r, r)
        e(f"v_mul_f32 v52, v{r}, v51")
        e(f"v_fma_f32 v53, -v52, v50, v{r}")
        e(f"v_fma_f32 v{r}, v53, v51, v52")
    for i in range(4):
        e(f"v_cvt_pk_bf16_f32 v{52+i}, v{40+2*i}, v{41+2*i}")
    e("s_lshl_b32 s60, s52, 10")
    e(f"s_add_u32 s60, s60, {K1_XN}")
    e("v_add_u32 v56, s60, v11")
    e("ds_write_b128 v56, v[52:55]")
    e("v_lshrrev_b32 v15, 1, v3")
    e("v_lshlrev_b32 v15, 14, v15")
    e("v_lshl_add_u32 v15, v2, 5, v15")
    e("v_and_b32 v56, 1, v3")
    e("v_lshl_add_u32 v15, v56, 4, v15")
    e("s_lshl_b32 s60, s53, 17")
    e("s_lshl_b32 s61, s54, 6")
    e("s_lshl_b32 s64, s52, 4")
    e("s_add_u32 s61, s61, s64")
    e("s_lshl_b32 s61, s61, 5")
    e("s_add_u32 s60, s60, s61")
    e(f"s_add_u32 s60, s60, {WS_UVT}")
    e("s_waitcnt vmcnt(8)")
    for u in range(4):
        e(f"buffer_store_dwordx4 v[{112+4*u}:{115+4*u}], v15, s[48:51], s60 offen offset:{128*u}")
    a.lab("K1_LNDONE")
    e("v_and_b32 v4, 3, v3")
    e("v_lshlrev_b32 v4, 10, v4")
    e("v_lshl_add_u32 v4, v2, 4, v4")
    e("s_lshr_b32 s69, s52, 3")
    e("s_lshl_b32 s60, s69, 9")
    e(f"s_add_u32 s60, s60, {K1_XN}")
    e("v_add_u32 v57, s60, v4")
    e("v_bfe_u32 v5, v1, 2, 2")
    e("v_and_b32 v6, 3, v1")
    e("v_and_b32 v9, 1, v2")
    e("v_lshl_add_u32 v9, v9, 2, v5")
    e("v_lshl_add_u32 v10, v2, 3, v5")
    e("v_lshlrev_b32 v14, 8, v10")
    e("v_lshl_add_u32 v14, v6, 3, v14")
    e("s_and_b32 s60, s52, 7")
    e("v_add_u32 v12, s60, v9")
    e("v_and_b32 v12, 7, v12")
    e("v_lshl_add_u32 v64, v12, 5, v14")
    e("s_lshl_b32 s60, s69, 16")
    e("v_add_u32 v64, s60, v64")
    e("v_lshlrev_b32 v12, 7, v10")
    e("v_lshl_add_u32 v72, v6, 3, v12")
    e("s_and_b32 s60, s52, 7")
    e("s_lshr_b32 s61, s60, 2")
    e("s_lshl_b32 s61, s61, 13")
    e("s_and_b32 s60, s60, 3")
    e("s_lshl_b32 s60, s60, 5")
    e("s_add_u32 s60, s60, s61")
    e("s_lshl_b32 s61, s69, 12")
    e("s_add_u32 s60, s60, s61")
    e(f"s_add_u32 s60, s60, {K1_GU}")
    e("v_add_u32 v72, s60, v72")
    e("s_lshl_b32 s60, s55, 1")
    e("s_add_u32 s60, s60, s69")
    e("s_lshl_b32 s61, s60, 6")
    e(f"s_add_u32 s61, s61, {K1_XN}")
    e("v_add_u32 v73, s61, v4")
    e("s_mul_i32 s60, s60, 4*3584*4")
    e("s_and_b32 s61, s52, 7")
    e("s_lshr_b32 s64, s61, 2")
    e("s_mul_i32 s64, s64, 1792*4")
    e("s_add_u32 s60, s60, s64")
    e("s_and_b32 s61, s61, 3")
    e("s_lshl_b32 s61, s61, 6")
    e("s_add_u32 s60, s60, s61")
    e("s_lshl_b32 s61, s66, 8")
    e("s_add_u32 s60, s60, s61")
    e(f"s_add_u32 s67, s60, {WS_GUP}")
    e("v_mul_u32_u24 v74, 3584*4, v3")
    e("v_lshl_add_u32 v74, v2, 4, v74")
    e("v_cmp_gt_u32 vcc, 4, v3")
    e("s_mov_b64 s[72:73], vcc")
    e("s_waitcnt lgkmcnt(0)")
    e("s_barrier")
    a.stamp()
    e("ds_read_b128 v[104:107], v73")
    e("ds_read_b64_tr_b16 v[108:109], v72")
    e("ds_read_b64_tr_b16 v[110:111], v72 offset:512")
    for s in range(8):
        e(f"ds_read_b128 v[{40+4*s}:{43+4*s}], v57 offset:{64*s}") if s < 4 else None
    e("s_waitcnt lgkmcnt(4)")
    e("v_mfma_f32_16x16x32_bf16 v[76:79], v[108:111], v[104:107], 0")
    for s in range(4, 8):
        e(f"ds_read_b128 v[{80+4*(s-4)}:{83+4*(s-4)}], v57 offset:{64*s}")
    e("s_cmp_eq_u32 s56, 0")
    e("s_cbranch_scc1 K1_NOGUST")
    e("s_mov_b64 exec, s[72:73]")
    e("s_nop 4")
    e("buffer_store_dwordx4 v[76:79], v74, s[48:51], s67 offen")
    e("s_mov_b64 exec, -1")
    e("s_waitcnt vmcnt(1)")
    e("s_branch K1_W1")
    a.lab("K1_NOGUST")
    e("s_waitcnt vmcnt(0)")
    a.lab("K1_W1")
    e("s_waitcnt lgkmcnt(0)")
    e("s_barrier")
    a.stamp()
    def xf(s): return 40 + 4*s if s < 4 else 80 + 4*(s-4)
    for s in range(8):
        e(f"ds_read_b64_tr_b16 v[{96+4*s}:{97+4*s}], v64 offset:{s*8192}")
        e(f"ds_read_b64_tr_b16 v[{98+4*s}:{99+4*s}], v64 offset:{s*8192+1024}")
    e("s_cmp_ge_u32 s52, 4")
    e("s_cbranch_scc1 K1_NOUKW")
    e("s_lshl_b32 s60, s52, 12")
    e(f"s_add_u32 s60, s60, {K1_GU}")
    for u in range(4):
        e(f"v_add_u32 v5, {4*u}, v2")
        e("v_xor_b32 v6, v5, v3")
        e("v_lshlrev_b32 v5, 8, v5")
        e("v_lshl_add_u32 v5, v6, 4, v5")
        e("v_add_u32 v5, s60, v5")
        e(f"ds_write_b128 v5, v[{24+4*u}:{27+4*u}]")
    e("s_waitcnt lgkmcnt(0)")
    a.lab("K1_NOUKW")
    for s in range(8):
        e(f"s_waitcnt lgkmcnt({14 - 2*s})")
        c = "v[76:79]" if s else "0"
        e(f"v_mfma_f32_16x16x32_bf16 v[76:79], v[{96+4*s}:{99+4*s}], v[{xf(s)}:{xf(s)+3}], {c}")
    e("v_lshlrev_b32 v4, 9, v3")
    e("v_lshl_add_u32 v4, v2, 4, v4")
    e("s_lshl_b32 s60, s69, 11")
    e("s_and_b32 s61, s52, 7")
    e("s_lshl_b32 s61, s61, 6")
    e("s_add_u32 s60, s60, s61")
    e(f"s_add_u32 s60, s60, {K1_QP}")
    e("v_add_u32 v4, s60, v4")
    e("s_mov_b64 exec, s[72:73]")
    e("s_nop 1")
    e("ds_write_b128 v4, v[76:79]")
    e("s_mov_b64 exec, -1")
    e("s_waitcnt lgkmcnt(0)")
    e("s_barrier")
    a.stamp()
    e("s_cmp_ge_u32 s52, 4")
    e("s_cbranch_scc1 K1_FIN")
    e("v_and_b32 v4, 3, v3")
    e("v_lshlrev_b32 v4, 9, v4")
    e("v_lshl_add_u32 v4, v2, 5, v4")
    e(f"v_add_u32 v4, {K1_QP}, v4")
    for s in range(4):
        for k in range(2):
            e(f"ds_read_b128 v[{40+16*s+8*k}:{43+16*s+8*k}], v4 offset:{2048*k + 128*s}")
            e(f"ds_read_b128 v[{44+16*s+8*k}:{47+16*s+8*k}], v4 offset:{2048*k + 128*s + 16}")
    e("s_lshl_b32 s60, s52, 12")
    e(f"s_add_u32 s60, s60, {K1_GU}")
    e("v_lshlrev_b32 v5, 8, v3")
    e("v_add_u32 v5, s60, v5")
    for s in range(4):
        e(f"v_add_u32 v6, {4*s}, v2")
        e("v_xor_b32 v6, v6, v3")
        e("v_lshl_add_u32 v6, v6, 4, v5")
        e(f"ds_read_b128 v[{24+4*s}:{27+4*s}], v6")
    e("s_waitcnt lgkmcnt(4)")
    for s in range(4):
        for i in range(8):
            e(f"v_add_f32 v{40+16*s+i}, v{40+16*s+i}, v{48+16*s+i}")
        for i in range(4):
            e(f"v_cvt_pk_bf16_f32 v{104+4*s+i}, v{40+16*s+2*i}, v{41+16*s+2*i}")
    e("s_waitcnt lgkmcnt(0)")
    e("s_nop 0")
    for s in range(4):
        c = "v[120:123]" if s else "0"
        e(f"v_mfma_f32_16x16x32_bf16 v[120:123], v[{24+4*s}:{27+4*s}], v[{104+4*s}:{107+4*s}], {c}")
    e("s_lshr_b32 s60, s53, 4")
    e("s_lshl_b32 s60, s60, 4")
    e("s_lshl_b32 s61, s54, 1")
    e("s_add_u32 s60, s60, s61")
    e("s_lshr_b32 s61, s52, 1")
    e("s_add_u32 s60, s60, s61")
    e("s_lshl_b32 s60, s60, 10")
    e("s_and_b32 s61, s52, 1")
    e("s_lshl_b32 s61, s61, 9")
    e("s_add_u32 s60, s60, s61")
    e("s_and_b32 s61, s53, 15")
    e("s_lshl_b32 s61, s61, 4")
    e("s_add_u32 s60, s60, s61")
    e(f"s_add_u32 s60, s60, {WS_QA}")
    e("v_lshlrev_b32 v4, 15, v3")
    e("v_lshrrev_b32 v5, 1, v2")
    e("v_lshl_add_u32 v4, v5, 8, v4")
    e("v_and_b32 v5, 1, v2")
    e("v_lshl_add_u32 v4, v5, 3, v4")
    e("v_cvt_pk_bf16_f32 v124, v120, v121")
    e("v_cvt_pk_bf16_f32 v125, v122, v123")
    e("s_mov_b64 exec, s[72:73]")
    e("buffer_store_dwordx2 v[124:125], v4, s[48:51], s60 offen")
    e("s_mov_b64 exec, -1")
    e("s_cmp_lg_u32 s2, 0")
    e("s_cbranch_scc1 K1_FIN")
    e("s_lshl_b32 s60, s52, 10")
    e(f"s_add_u32 s61, s60, {K1_XN}")
    e("v_add_u32 v4, s61, v11")
    e("ds_read_b128 v[52:55], v4")
    e(f"s_add_u32 s60, s60, {WS_XN}")
    e("s_waitcnt lgkmcnt(0)")
    e("buffer_store_dwordx4 v[52:55], v11, s[48:51], s60 offen")
    e("v_mov_b32 v57, 0")
    for i in range(4):
        e(f"v_lshlrev_b32 v58, 16, v{52+i}")
        e(f"v_lshlrev_b32 v59, 16, v{20+i}")
        e("v_fmac_f32 v57, v58, v59")
        e(f"v_and_b32 v58, 0xffff0000, v{52+i}")
        e(f"v_and_b32 v59, 0xffff0000, v{20+i}")
        e("v_fmac_f32 v57, v58, v59")
    a.wave_sum(57)
    a.rne(57, 57)
    e(f"v_mul_f32 v58, {hex(NLOG2E)}, v57")
    e("v_exp_f32 v58, v58")
    e("s_nop 0")
    e("v_add_f32 v58, 1.0, v58")
    e("v_rcp_f32 v58, v58")
    e("s_nop 0")
    a.rne(58, 58)
    e("s_lshl_b32 s60, s52, 2")
    e(f"s_add_u32 s60, s60, {WS_RS}")
    e("v_mov_b32 v59, 0")
    e("v_cmp_eq_u32 vcc, 63, v1")
    e("s_and_saveexec_b64 s[74:75], vcc")
    e("buffer_store_dword v58, v59, s[48:51], s60 offen")
    a.lab("K1_FIN")
    a.stamp()
    a.stamp_out(0)
    a.lab("K1_END")
    e("s_endpgm")

K2_QAI = 131072
K2_PI = K2_QAI + 16384
K2_MX = K2_PI + 4096
K2_LS = K2_MX + 512
K2_OI = 0
K2_LDS = K2_LS + 512

def gen_k2(a):
    head(a, 'k2_kernel')
    e = a.e
    e("s_cmp_ge_u32 s2, 256")
    e("s_cbranch_scc1 K2_END")
    a.stamp()
    e("s_load_dwordx2 s[4:5], s[0:1], 8")
    e("s_load_dwordx2 s[20:21], s[0:1], 104")
    lanes(e)
    e("s_and_b32 s57, s2, 7")
    e("s_lshr_b32 s58, s2, 3")
    e("s_and_b32 s53, s58, 1")
    e("s_lshr_b32 s58, s58, 1")
    e("s_lshl_b32 s57, s57, 4")
    e("s_add_u32 s58, s58, s57")
    e("s_lshr_b32 s54, s58, 5")
    e("s_and_b32 s59, s52, 1")
    e("s_lshl_b32 s59, s59, 7")
    e("v_xor_b32 v12, s59, v11")
    for f in range(1, 4):
        e(f"v_xor_b32 v{12+f}, {f*32}, v12")
    e("s_lshl_b32 s60, s58, 17")
    e("s_lshl_b32 s61, s52, 13")
    e("s_add_u32 s60, s60, s61")
    e("s_lshl_b32 s63, s54, 1")
    e("s_add_u32 s63, s63, s53")
    e("s_lshl_b32 s63, s63, 14")
    e("s_lshl_b32 s64, s52, 10")
    e("s_add_u32 s63, s63, s64")
    e(f"s_add_u32 s63, s63, {WS_QA}")
    e("s_waitcnt lgkmcnt(0)")
    a.srd(24, 4, 0x1000000)
    a.srd(48, 20, WS_END2)
    for u in range(8):
        e(f"s_add_u32 m0, s61, {u*1024}")
        e(f"s_add_u32 s62, s60, {u*1024}")
        e(f"buffer_load_dwordx4 v{12 + (u & 3)}, s[24:27], s62 offen nt lds")
    e(f"s_add_u32 m0, s64, {K2_QAI}")
    e("s_nop 0")
    e("buffer_load_dwordx4 v11, s[48:51], s63 offen lds")
    a.stamp()
    e("v_and_b32 v4, 8, v3")
    e("v_and_b32 v5, 3, v3")
    e("v_lshl_or_b32 v4, v5, 1, v4")
    e("v_and_b32 v5, 2, v4")
    e("v_xor_b32 v5, v5, v2")
    e("v_and_b32 v4, 12, v4")
    e("v_lshlrev_b32 v6, 10, v3")
    e("v_lshl_add_u32 v6, v5, 4, v6")
    e("s_lshl_b32 s61, s52, 14")
    e("v_add_u32 v6, s61, v6")
    for q in range(4):
        e(f"v_xor_b32 v7, {4*q}, v4")
        e(f"v_lshl_add_u32 v{20+q}, v7, 4, v6")
    e("v_bfe_u32 v4, v1, 2, 2")
    e("v_and_b32 v5, 3, v1")
    e("v_lshl_add_u32 v6, v2, 3, v4")
    e("v_lshlrev_b32 v6, 10, v6")
    e("v_and_b32 v8, 1, v5")
    e("v_lshl_add_u32 v6, v8, 3, v6")
    e("v_and_b32 v7, 1, v2")
    e("v_lshlrev_b32 v7, 3, v7")
    e("v_lshl_or_b32 v7, v4, 1, v7")
    e("v_lshrrev_b32 v8, 1, v5")
    e("s_lshl_b32 s62, s52, 2")
    e("v_add_u32 v8, s62, v8")
    for ct in range(2):
        e(f"v_add_u32 v9, {2*ct}, v8")
        e("v_xor_b32 v9, v9, v7")
        e(f"v_lshl_add_u32 v{24+ct}, v9, 4, v6")
        e(f"v_add_u32 v{26+ct}, 0x10000, v{24+ct}")
    e("v_lshlrev_b32 v38, 5, v3")
    e(f"s_mov_b32 s63, {hex(SCALE)}")
    e(f"s_mov_b32 s64, {hex(LOG2E)}")
    e("s_waitcnt vmcnt(0)")
    e("s_barrier")
    a.stamp()
    e("s_cmp_ge_u32 s52, 8")
    e("s_cbranch_scc1 K2_NOQK")
    e(f"v_add_u32 v4, {K2_QAI}, v11")
    for s in range(16):
        e(f"ds_read_b128 v[{64+4*s}:{67+4*s}], v4 offset:{1024*s}")
    for s in range(6):
        e(f"ds_read_b128 v[{40+4*s}:{43+4*s}], v{20 + (s & 3)} offset:{256*(s >> 2)}")
    for s in range(16):
        outstanding_after = min(5, 15 - s)
        e(f"s_waitcnt lgkmcnt({outstanding_after})")
        c = "v[32:35]" if s else "0"
        r = 40 + 4 * (s % 6)
        e(f"v_mfma_f32_16x16x32_bf16 v[32:35], v[{r}:{r+3}], v[{64+4*s}:{67+4*s}], {c}")
        if s + 6 < 16:
            s2 = s + 6
            e("s_nop 0")
            e(f"ds_read_b128 v[{r}:{r+3}], v{20 + (s2 & 3)} offset:{256*(s2 >> 2)}")
    e("s_nop 7")
    for r in range(4):
        a.rne(32 + r, 32 + r)
        e(f"v_mul_f32 v{32+r}, s63, v{32+r}")
        a.rne(32 + r, 32 + r)
    e("v_max_f32 v36, v32, v33")
    e("v_max3_f32 v36, v36, v34, v35")
    xreduce_rows(a, 36, 37, "v_max_f32")
    e("s_lshl_b32 s62, s52, 2")
    e(f"s_add_u32 s62, s62, {K2_MX}")
    e("v_add_u32 v39, s62, v38")
    e("ds_write_b32 v39, v36")
    e("s_waitcnt lgkmcnt(0)")
    e("s_barrier")
    e(f"v_add_u32 v39, {K2_MX}, v38")
    e("ds_read_b128 v[40:43], v39")
    e("ds_read_b128 v[44:47], v39 offset:16")
    e("s_waitcnt lgkmcnt(0)")
    e("v_max3_f32 v40, v40, v41, v42")
    e("v_max3_f32 v44, v44, v45, v46")
    e("v_max3_f32 v40, v40, v43, v47")
    e("v_max_f32 v40, v40, v44")
    for r in range(4):
        e(f"v_sub_f32 v{32+r}, v{32+r}, v40")
        e(f"v_mul_f32 v{32+r}, s64, v{32+r}")
        e(f"v_exp_f32 v{32+r}, v{32+r}")
    e("s_nop 0")
    e("v_add_f32 v36, v32, v33")
    e("v_add_f32 v37, v34, v35")
    e("v_add_f32 v36, v36, v37")
    e("v_cvt_pk_bf16_f32 v42, v32, v33")
    e("v_cvt_pk_bf16_f32 v43, v34, v35")
    e("s_lshl_b32 s62, s52, 9")
    e(f"s_add_u32 s62, s62, {K2_PI}")
    e("v_lshrrev_b32 v44, 1, v2")
    e("v_lshlrev_b32 v44, 8, v44")
    e("v_lshl_add_u32 v44, v3, 4, v44")
    e("v_and_b32 v45, 1, v2")
    e("v_lshl_add_u32 v44, v45, 3, v44")
    e("v_add_u32 v44, s62, v44")
    e("ds_write_b64 v44, v[42:43]")
    xreduce_rows(a, 36, 37, "v_add_f32")
    e("s_lshl_b32 s62, s52, 2")
    e(f"s_add_u32 s62, s62, {K2_LS}")
    e("v_add_u32 v39, s62, v38")
    e("ds_write_b32 v39, v36")
    e("s_branch K2_PV0")
    a.lab("K2_NOQK")
    e("s_barrier")
    a.lab("K2_PV0")
    for ks in range(4):
        for ct in range(2):
            base = (24 if ks < 2 else 26) + ct
            off = (ks & 1) * 32768
            r = 64 + 4 * (2 * ks + ct)
            e(f"ds_read_b64_tr_b16 v[{r}:{r+1}], v{base} offset:{off}")
            e(f"ds_read_b64_tr_b16 v[{r+2}:{r+3}], v{base} offset:{off+4096}")
    e("s_waitcnt lgkmcnt(0)")
    e("s_barrier")
    a.stamp()
    e(f"v_add_u32 v4, {K2_PI}, v11")
    for ks in range(4):
        e(f"ds_read_b128 v[{48+4*ks}:{51+4*ks}], v4 offset:{1024*ks}")
    for ks in range(4):
        e(f"s_waitcnt lgkmcnt({3-ks})")
        for ct in range(2):
            r = 64 + 4 * (2 * ks + ct)
            c = f"v[{96+4*ct}:{99+4*ct}]" if ks else "0"
            e(f"v_mfma_f32_16x16x32_bf16 v[{96+4*ct}:{99+4*ct}], v[{r}:{r+3}], v[{48+4*ks}:{51+4*ks}], {c}")
    e("v_mul_u32_u24 v4, 1040, v3")
    e("v_lshl_add_u32 v4, v2, 3, v4")
    e("s_lshl_b32 s61, s52, 6")
    e(f"s_add_u32 s61, s61, {K2_OI}")
    e("v_add_u32 v4, s61, v4")
    e("s_nop 2")
    for ct in range(2):
        e(f"v_cvt_pk_bf16_f32 v{104+2*ct}, v{96+4*ct}, v{97+4*ct}")
        e(f"v_cvt_pk_bf16_f32 v{105+2*ct}, v{98+4*ct}, v{99+4*ct}")
        e(f"ds_write_b64 v4, v[{104+2*ct}:{105+2*ct}] offset:{32*ct}")
    e("s_mul_i32 s61, s52, 1040")
    e(f"s_add_u32 s61, s61, {K2_OI}")
    e("v_add_u32 v4, s61, v11")
    e("s_lshl_b32 s60, s53, 4")
    e("s_add_u32 s60, s60, s52")
    e("s_lshl_b32 s60, s60, 17")
    e("s_lshl_b32 s61, s58, 10")
    e("s_add_u32 s60, s60, s61")
    e(f"s_add_u32 s60, s60, {WS_PART}")
    e("s_waitcnt lgkmcnt(0)")
    e("s_barrier")
    e("ds_read_b128 v[104:107], v4")
    e("s_waitcnt lgkmcnt(0)")
    e("buffer_store_dwordx4 v[104:107], v11, s[48:51], s60 offen " + ('nt' if 'stnt' in FL else '') + (' sc0 sc1' if 'stsc' in FL else ''))
    a.stamp()
    e("s_cmp_lg_u32 s52, 0")
    e("s_cbranch_scc1 K2_FIN")
    e(f"v_add_u32 v39, {K2_LS}, v38")
    e("ds_read_b128 v[88:91], v39")
    e("ds_read_b128 v[92:95], v39 offset:16")
    e("s_waitcnt lgkmcnt(0)")
    e("v_add_f32 v88, v88, v89")
    e("v_add_f32 v90, v90, v91")
    e("v_add_f32 v92, v92, v93")
    e("v_add_f32 v94, v94, v95")
    e("v_add_f32 v88, v88, v90")
    e("v_add_f32 v92, v92, v94")
    e("v_add_f32 v41, v88, v92")
    e("s_lshl_b32 s60, s53, 14")
    e("s_lshl_b32 s61, s58, 3")
    e("s_add_u32 s60, s60, s61")
    e(f"s_add_u32 s60, s60, {WS_ML}")
    e("v_lshlrev_b32 v4, 10, v3")
    e("v_cmp_gt_u32 vcc, 16, v1")
    e("s_and_saveexec_b64 s[72:73], vcc")
    e("buffer_store_dwordx2 v[40:41], v4, s[48:51], s60 offen")
    a.lab("K2_FIN")
    a.stamp()
    a.stamp_out(1)
    a.lab("K2_END")
    e("s_endpgm")


K3_UV = 0
K3_WO = 16384
K3_CL = 32768
K3_CP = K3_CL + 4096
K3_WD = K3_CP + 1024
K3_GS = K3_WD + 8192
K3_LDS = K3_GS + 4096

def gen_k3(a):
    head(a, 'k3_kernel')
    e = a.e
    e("s_cmp_ge_u32 s2, 256")
    e("s_cbranch_scc1 K3_END")
    a.stamp()
    e("s_load_dwordx2 s[10:11], s[0:1], 40")
    e("s_load_dwordx2 s[12:13], s[0:1], 80")
    e("s_load_dwordx2 s[20:21], s[0:1], 104")
    lanes(e)
    e("v_and_b32 v14, 7, v1")
    e("v_min_u32 v14, 6, v14")
    e("v_bfe_u32 v15, v1, 3, 1")
    e("v_mul_u32_u24 v15, 1792, v15")
    e("v_add_u32 v14, v14, v15")
    e("v_mul_u32_u24 v15, 3584, v2")
    e("v_add_u32 v14, v14, v15")
    e("v_lshlrev_b32 v14, 2, v14")
    e("v_cmp_gt_u32 vcc, 4, v3")
    e("s_mov_b64 s[72:73], vcc")
    e("s_and_b32 s57, s2, 7")
    e("s_lshr_b32 s58, s2, 3")
    e("s_and_b32 s59, s58, 3")
    e("s_lshl_b32 s53, s57, 2")
    e("s_add_u32 s53, s53, s59")
    e("s_lshr_b32 s54, s58, 2")
    e("s_lshl_b32 s69, s54, 1")
    e("s_add_u32 s69, s69, s52")
    e("s_and_b32 s69, s69, 15")
    e("s_lshr_b32 s55, s69, 2")
    e("s_lshl_b32 s60, s53, 2")
    e("s_add_u32 s60, s60, s55")
    e("v_lshlrev_b32 v12, 10, v2")
    e("v_lshl_add_u32 v12, v3, 4, v12")
    e("v_and_b32 v4, 31, v1")
    e("v_lshlrev_b32 v4, 3, v4")
    e("s_waitcnt lgkmcnt(0)")
    a.srd(48, 20, WS_END2)
    a.srd(28, 10, 0x400000)
    a.srd(32, 12, 1792 * 1024)
    e("s_cmp_ge_u32 s52, 4")
    e("s_cbranch_scc1 K3_NOCOLD")
    e("s_mul_i32 s65, s2, 7168")
    for r in range(2):
        e("s_lshl_b32 s66, s52, 1")
        e(f"s_add_u32 s66, s66, {r}")
        e("s_min_u32 s66, s66, 6")
        e("s_lshl_b32 s67, s66, 5")
        e("v_xor_b32 v6, s67, v11")
        e("s_lshl_b32 s66, s66, 10")
        e(f"s_add_u32 m0, s66, {K3_WD}")
        e("s_add_u32 s66, s66, s65")
        e("buffer_load_dwordx4 v6, s[32:35], s66 offen nt lds")
    e("s_lshl_b32 s62, s52, 12")
    e("s_lshl_b32 s61, s53, 7")
    e("s_lshl_b32 s63, s54, 4")
    e("s_add_u32 s61, s61, s63")
    e("s_lshl_b32 s63, s52, 2")
    e("s_add_u32 s61, s61, s63")
    e("s_lshl_b32 s61, s61, 10")
    e("s_and_b32 s63, s52, 1")
    e("s_lshl_b32 s63, s63, 7")
    for u in range(4):
        e(f"s_add_u32 s64, s63, {u*32}")
        e("v_xor_b32 v6, s64, v11")
        e(f"s_add_u32 m0, s62, {K3_WO + u*1024}")
        e(f"s_add_u32 s65, s61, {u*1024}")
        e("buffer_load_dwordx4 v6, s[28:31], s65 offen nt lds")
    e("s_lshl_b32 s61, s53, 3")
    e("s_add_u32 s61, s61, s54")
    e("s_lshl_b32 s61, s61, 14")
    e("s_add_u32 s61, s61, s62")
    e(f"s_add_u32 s61, s61, {WS_UVT}")
    for u in range(4):
        e(f"s_add_u32 m0, s62, {K3_UV + u*1024}")
        e(f"s_add_u32 s63, s61, {u*1024}")
        e("buffer_load_dwordx4 v11, s[48:51], s63 offen lds")
    a.lab("K3_NOCOLD")
    e("s_lshl_b32 s61, s60, 8")
    e(f"s_add_u32 s61, s61, {WS_ML}")
    e("buffer_load_dwordx2 v[16:17], v4, s[48:51], s61 offen")
    e("s_mul_i32 s65, s2, 28")
    e("s_mul_i32 s66, s52, 4*3584*4")
    e("s_add_u32 s65, s65, s66")
    e(f"s_add_u32 s65, s65, {WS_GUP}")
    e("buffer_load_dword v21, v14, s[48:51], s65 offen")
    e("s_lshl_b32 s61, s60, 15")
    e("s_and_b32 s62, s69, 3")
    e("s_lshl_b32 s63, s62, 8")
    e("s_add_u32 s61, s61, s63")
    e(f"s_add_u32 s61, s61, {WS_PART}")
    for u in range(8):
        e(f"s_add_u32 s63, s61, {u*4096}")
        e(f"buffer_load_dwordx4 v[{64+4*u}:{67+4*u}], v12, s[48:51], s63 offen")
    a.stamp()
    e("v_lshlrev_b32 v13, 2, v2")
    e("s_lshl_b32 s64, s52, 8")
    e(f"s_add_u32 s64, s64, {K3_GS}")
    e("v_lshl_add_u32 v15, v1, 2, s64")
    e("s_waitcnt vmcnt(8)")
    e("ds_write_b32 v15, v21")
    e("v_mov_b32 v18, v16")
    for n in (1, 2, 4, 8):
        e("s_nop 1")
        e(f"v_max_f32_dpp v18, v18, v18 row_shr:{n} row_mask:0xf bank_mask:0xf")
    e("s_nop 1")
    e("v_readlane_b32 s64, v18, 15")
    e("v_readlane_b32 s65, v18, 31")
    e("s_nop 1")
    e("v_mov_b32 v18, s64")
    e("v_max_f32 v18, s65, v18")
    e("v_sub_f32 v19, v16, v18")
    e(f"v_mul_f32 v19, {hex(LOG2E)}, v19")
    e("v_exp_f32 v19, v19")
    e("s_nop 0")
    e("v_mul_f32 v20, v19, v17")
    for n in (1, 2, 4, 8):
        e("s_nop 1")
        e(f"v_add_f32_dpp v20, v20, v20 row_shr:{n} row_mask:0xf bank_mask:0xf bound_ctrl:0")
    e("s_nop 1")
    e("v_readlane_b32 s64, v20, 15")
    e("v_readlane_b32 s65, v20, 31")
    e("s_nop 1")
    e("v_mov_b32 v20, s64")
    e("v_add_f32 v20, s65, v20")
    e("v_rcp_f32 v20, v20")
    e("s_nop 0")
    e("v_mul_f32 v19, v19, v20")
    for u in range(8):
        e(f"ds_bpermute_b32 v{48+u}, v13, v19 offset:{16*u}")
    for u in range(8):
        e(f"s_waitcnt vmcnt({7-u}) lgkmcnt({7-u})")
        for i in range(4):
            e(f"v_lshlrev_b32 v40, 16, v{64+4*u+i}")
            e(f"v_and_b32 v41, 0xffff0000, v{64+4*u+i}")
            if u == 0:
                e(f"v_mul_f32 v{24+2*i}, v{48+u}, v40")
                e(f"v_mul_f32 v{25+2*i}, v{48+u}, v41")
            else:
                e(f"v_fmac_f32 v{24+2*i}, v{48+u}, v40")
                e(f"v_fmac_f32 v{25+2*i}, v{48+u}, v41")
    a.stamp()
    for sw in ("v_permlane32_swap_b32", "v_permlane16_swap_b32"):
        for i in range(8):
            e(f"v_mov_b32 v{32+i}, v{24+i}")
        e("s_nop 0")
        for i in range(8):
            e(f"{sw} v{24+i}, v{32+i}")
        e("s_nop 0")
        for i in range(8):
            e(f"v_add_f32 v{24+i}, v{24+i}, v{32+i}")
    for i in range(4):
        e(f"v_cvt_pk_bf16_f32 v{32+i}, v{24+2*i}, v{25+2*i}")
    e("s_lshl_b32 s64, s55, 10")
    e("s_lshl_b32 s65, s62, 8")
    e("s_add_u32 s64, s64, s65")
    e(f"s_add_u32 s64, s64, {K3_CL}")
    e("v_lshl_add_u32 v4, v3, 4, s64")
    e("ds_write_b128 v4, v[32:35]")
    e("v_and_b32 v6, 3, v3")
    e("v_lshlrev_b32 v6, 10, v6")
    e("v_lshl_add_u32 v6, v2, 4, v6")
    e("s_lshl_b32 s64, s52, 8")
    e(f"s_add_u32 s64, s64, {K3_CL}")
    e("v_add_u32 v6, s64, v6")
    e("v_bfe_u32 v7, v1, 2, 2")
    e("v_lshl_add_u32 v4, v2, 3, v7")
    e("v_lshlrev_b32 v4, 5, v4")
    e("v_and_b32 v8, 3, v1")
    e("v_lshl_add_u32 v4, v8, 3, v4")
    e("s_lshl_b32 s64, s52, 12")
    e("v_add_u32 v4, s64, v4")
    e("s_waitcnt lgkmcnt(0)")
    e("s_barrier")
    a.stamp()
    e("s_cmp_ge_u32 s52, 4")
    e("s_cbranch_scc1 K3_DOWN")
    for s in range(4):
        e(f"ds_read_b128 v[{64+4*s}:{67+4*s}], v6 offset:{64*s}")
        e(f"ds_read_b64_tr_b16 v[{80+4*s}:{81+4*s}], v4 offset:{K3_UV + 1024*s}")
        e(f"ds_read_b64_tr_b16 v[{82+4*s}:{83+4*s}], v4 offset:{K3_UV + 1024*s+128}")
    e("v_lshl_add_u32 v9, v2, 2, v7")
    e("v_and_b32 v5, 7, v9")
    e("v_lshlrev_b32 v9, 10, v9")
    e("v_lshl_add_u32 v9, v8, 3, v9")
    e("s_lshl_b32 s64, s52, 8")
    e(f"s_add_u32 s64, s64, {K3_WO}")
    e("v_add_u32 v9, s64, v9")
    for s in range(4):
        e(f"s_waitcnt lgkmcnt({9 - 3*s})")
        c = "v[32:35]" if s else "0"
        e(f"v_mfma_f32_16x16x32_bf16 v[32:35], v[{80+4*s}:{83+4*s}], v[{64+4*s}:{67+4*s}], {c}")
    for t in range(8):
        e(f"v_xor_b32 v6, {t}, v5")
        e("v_lshl_add_u32 v6, v6, 5, v9")
        e(f"ds_read_b64_tr_b16 v[{96+2*t}:{97+2*t}], v6")
    e("v_lshlrev_b32 v4, 6, v3")
    e("v_lshl_add_u32 v4, v2, 4, v4")
    e("s_lshl_b32 s64, s52, 8")
    e(f"s_add_u32 s64, s64, {K3_CP}")
    e("v_add_u32 v4, s64, v4")
    e("v_and_b32 v6, 3, v3")
    e("v_lshlrev_b32 v6, 6, v6")
    e("v_lshl_add_u32 v6, v2, 4, v6")
    e(f"v_add_u32 v6, {K3_CP}, v6")
    e("s_mov_b64 exec, s[72:73]")
    e("ds_write_b128 v4, v[32:35]")
    e("s_mov_b64 exec, -1")
    e("s_waitcnt lgkmcnt(0)")
    e("s_barrier")
    for w in range(4):
        e(f"ds_read_b128 v[{64+4*w}:{67+4*w}], v6 offset:{256*w}")
    e("s_lshl_b32 s64, s2, 13")
    e("s_lshl_b32 s65, s52, 9")
    e("s_add_u32 s64, s64, s65")
    e(f"s_add_u32 s64, s64, {WS_SP}")
    e("v_lshlrev_b32 v4, 11, v3")
    e("v_lshl_add_u32 v4, v2, 4, v4")
    e("s_waitcnt lgkmcnt(0)")
    for c in range(4):
        e(f"v_add_f32 v{64+c}, v{64+c}, v{68+c}")
        e(f"v_add_f32 v{72+c}, v{72+c}, v{76+c}")
        e(f"v_add_f32 v{64+c}, v{64+c}, v{72+c}")
    e("v_cvt_pk_bf16_f32 v42, v64, v65")
    e("v_cvt_pk_bf16_f32 v43, v66, v67")
    e("s_nop 1")
    for t in range(8):
        e(f"v_mfma_f32_16x16x16_bf16 v[{64+4*t}:{67+4*t}], v[{96+2*t}:{97+2*t}], v[42:43], 0")
    e("s_mov_b64 exec, s[72:73]")
    e("s_nop 3")
    for t in range(8):
        e(f"buffer_store_dwordx4 v[{64+4*t}:{67+4*t}], v4, s[48:51], s64 offen offset:{64*t}")
    e("s_branch K3_FIN")
    a.lab("K3_DOWN")
    e("s_cmp_ge_u32 s52, 12")
    e("s_cbranch_scc1 K3_FIN")
    e("v_lshlrev_b32 v4, 2, v1")
    e(f"v_add_u32 v4, {K3_GS}, v4")
    for k in range(16):
        e(f"ds_read_b32 v{64+k}, v4 offset:{256*k}")
    e("v_lshl_add_u32 v9, v2, 2, v7")
    e("v_min_u32 v9, 6, v9")
    e("v_lshlrev_b32 v5, 10, v9")
    e("v_lshl_add_u32 v5, v8, 3, v5")
    e(f"v_add_u32 v5, {K3_WD}, v5")
    e("s_sub_u32 s65, s52, 4")
    e("s_lshl_b32 s65, s65, 2")
    e("s_waitcnt lgkmcnt(0)")
    for t in range(4):
        e(f"s_add_u32 s66, s65, {t}")
        e("v_xor_b32 v6, s66, v9")
        e("v_lshl_add_u32 v6, v6, 5, v5")
        e(f"ds_read_b64_tr_b16 v[{96+2*t}:{97+2*t}], v6")
    for k in range(1, 16):
        e(f"v_add_f32 v64, v64, v{64+k}")
    a.rne(64, 64)
    e("v_mov_b32 v65, v64")
    e("s_nop 1")
    e("v_mov_b32_dpp v65, v64 row_shl:8 row_mask:0xf bank_mask:0xf")
    e(f"v_mul_f32 v66, {hex(NLOG2E)}, v64")
    e("v_exp_f32 v66, v66")
    e("s_nop 0")
    e("v_add_f32 v66, 1.0, v66")
    e("v_rcp_f32 v66, v66")
    e("s_nop 0")
    e("v_mul_f32 v64, v64, v66")
    a.rne(64, 64)
    e("v_mul_f32 v64, v64, v65")
    a.rne(64, 64)
    e("v_cmp_gt_u32 vcc, 7, v3")
    e("s_nop 1")
    e("v_cndmask_b32 v64, 0, v64, vcc")
    e("v_and_b32 v4, 3, v3")
    e("v_lshlrev_b32 v4, 6, v4")
    e("v_lshl_add_u32 v4, v2, 4, v4")
    for c in range(4):
        e(f"ds_bpermute_b32 v{68+c}, v4, v64 offset:{4*c}")
    e("s_waitcnt lgkmcnt(0)")
    e("s_barrier")
    e("v_cvt_pk_bf16_f32 v42, v68, v69")
    e("v_cvt_pk_bf16_f32 v43, v70, v71")
    e("s_add_u32 s66, s2, 256")
    e("s_lshl_b32 s66, s66, 13")
    for t in range(4):
        e(f"v_mfma_f32_16x16x16_bf16 v[{72+4*t}:{75+4*t}], v[{96+2*t}:{97+2*t}], v[42:43], 0")
    e("s_lshl_b32 s65, s65, 6")
    e("s_add_u32 s66, s66, s65")
    e(f"s_add_u32 s66, s66, {WS_SP}")
    e("v_lshlrev_b32 v4, 11, v3")
    e("v_lshl_add_u32 v4, v2, 4, v4")
    e("s_mov_b64 exec, s[72:73]")
    e("s_nop 3")
    for t in range(4):
        e(f"buffer_store_dwordx4 v[{72+4*t}:{75+4*t}], v4, s[48:51], s66 offen offset:{64*t}")
    a.lab("K3_FIN")
    a.stamp()
    a.stamp_out(2)
    a.lab("K3_END")
    e("s_endpgm")

K4_LDS = 2048

def gen_k4(a):
    head(a, 'k4_kernel')
    e = a.e
    e("s_cmp_ge_u32 s2, 64")
    e("s_cbranch_scc1 K4_END")
    a.stamp()
    e("s_load_dwordx2 s[4:5], s[0:1], 0")
    e("s_load_dwordx2 s[8:9], s[0:1], 88")
    e("s_load_dwordx2 s[20:21], s[0:1], 104")
    e("v_and_b32 v1, 63, v0")
    e("v_lshrrev_b32 v4, 6, v0")
    e("v_lshrrev_b32 v2, 3, v0")
    e("v_readfirstlane_b32 s52, v4")
    e("s_lshr_b32 s53, s2, 4")
    e("s_and_b32 s54, s2, 15")
    e("v_and_b32 v3, 7, v0")
    e("v_lshlrev_b32 v4, 13, v2")
    e("v_lshl_add_u32 v4, v3, 4, v4")
    e("s_lshl_b32 s60, s53, 11")
    e("s_lshl_b32 s61, s54, 7")
    e("s_add_u32 s60, s60, s61")
    e(f"s_add_u32 s60, s60, {WS_SP}")
    e("v_and_b32 v5, 31, v1")
    e("v_lshlrev_b32 v5, 1, v5")
    e("v_mov_b32 v6, 0")
    e("s_waitcnt lgkmcnt(0)")
    a.srd(24, 4, 4096)
    a.srd(28, 8, 4096)
    a.srd(48, 20, WS_END)
    for i in range(8):
        e(f"s_add_u32 s61, s60, {i*64*8192}")
        e(f"buffer_load_dwordx4 v[{16+4*i}:{19+4*i}], v4, s[48:51], s61 offen")
    e("s_lshl_b32 s61, s53, 10")
    e("s_lshl_b32 s62, s54, 6")
    e("s_add_u32 s61, s61, s62")
    e("buffer_load_ushort v50, v5, s[24:27], s61 offen")
    e(f"s_add_u32 s62, s61, {WS_XN}")
    e("buffer_load_ushort v51, v5, s[48:51], s62 offen")
    e("s_lshl_b32 s62, s53, 2")
    e(f"s_add_u32 s62, s62, {WS_RS}")
    e("buffer_load_dword v52, v6, s[48:51], s62 offen")
    a.stamp()
    e("s_waitcnt vmcnt(3)")
    a.stamp()
    for c in range(4):
        e(f"v_add_f32 v{16+c}, v{16+c}, v{20+c}")
        e(f"v_add_f32 v{24+c}, v{24+c}, v{28+c}")
        e(f"v_add_f32 v{16+c}, v{16+c}, v{24+c}")
        e(f"v_add_f32 v{32+c}, v{32+c}, v{36+c}")
        e(f"v_add_f32 v{40+c}, v{40+c}, v{44+c}")
        e(f"v_add_f32 v{20+c}, v{32+c}, v{40+c}")
    e("s_nop 1")
    for c in range(8):
        e(f"v_add_f32_dpp v{16+c}, v{16+c}, v{16+c} row_shr:8 row_mask:0xf bank_mask:0xf bound_ctrl:0")
    for c in range(8):
        e(f"v_mov_b32 v{24+c}, v{16+c}")
    e("s_nop 1")
    for c in range(8):
        e(f"v_permlane32_swap_b32 v{16+c}, v{24+c}")
    e("s_nop 1")
    for c in range(8):
        e(f"v_add_f32 v{16+c}, v{16+c}, v{24+c}")
    for c in range(8):
        e(f"v_mov_b32 v{24+c}, v{16+c}")
    e("s_nop 1")
    for c in range(8):
        e(f"v_permlane16_swap_b32 v{16+c}, v{24+c}")
    e("s_nop 1")
    for c in range(8):
        e(f"v_add_f32 v{16+c}, v{16+c}, v{24+c}")
    e("s_lshl_b32 s62, s52, 8")
    e("v_lshl_add_u32 v6, v3, 4, s62")
    e("v_and_b32 v7, 56, v1")
    e("v_cmp_eq_u32 vcc, 8, v7")
    e("s_and_saveexec_b64 s[72:73], vcc")
    e("ds_write_b128 v6, v[16:19]")
    e("ds_write_b128 v6, v[20:23] offset:128")
    e("s_mov_b64 exec, s[72:73]")
    e("s_waitcnt lgkmcnt(0)")
    e("s_barrier")
    e("s_cmp_lg_u32 s52, 0")
    e("s_cbranch_scc1 K4_FIN")
    e("v_lshlrev_b32 v6, 1, v5")
    for w in range(8):
        e(f"ds_read_b32 v{16+w}, v6 offset:{256*w}")
        e(f"ds_read_b32 v{24+w}, v6 offset:{256*w+128}")
    e("s_waitcnt vmcnt(0) lgkmcnt(0)")
    for w in range(1, 8):
        e(f"v_add_f32 v16, v16, v{16+w}")
        e(f"v_add_f32 v24, v24, v{24+w}")
    a.rne(16, 16)
    a.rne(20, 24)
    e("v_mul_f32 v20, v20, v52")
    a.rne(20, 20)
    e("v_lshlrev_b32 v51, 16, v51")
    e("v_lshlrev_b32 v50, 16, v50")
    e("v_add_f32 v20, v51, v20")
    a.rne(20, 20)
    e(f"v_mul_f32 v21, {hex(NLOG2E)}, v20")
    e("v_exp_f32 v21, v21")
    e("s_nop 0")
    e("v_add_f32 v21, 1.0, v21")
    e("v_rcp_f32 v21, v21")
    e("s_nop 0")
    e("v_mul_f32 v20, v20, v21")
    a.rne(20, 20)
    e("v_mul_f32 v16, v16, v20")
    a.rne(16, 16)
    e("v_add_f32 v16, v50, v16")
    e("v_cvt_pk_bf16_f32 v16, v16, v16")
    e("v_cmp_gt_u32 vcc, 32, v1")
    e("s_and_saveexec_b64 s[72:73], vcc")
    e("buffer_store_short v16, v5, s[28:31], s61 offen")
    a.lab("K4_FIN")
    a.stamp()
    a.stamp_out(3)
    a.lab("K4_END")
    e("s_endpgm")


def build():
    hdr = open(REF).read().split('; Override')[0]
    s = hdr
    s += f"; @launch kernel=k1_kernel grid=(256,1,1) block=(1024,1,1) lds={K1_LDS}\n"
    s += f"; @launch kernel=k2_kernel grid=(256,1,1) block=(1024,1,1) lds={K2_LDS}\n"
    s += f"; @launch kernel=k3_kernel grid=(256,1,1) block=(1024,1,1) lds={K3_LDS}\n"
    s += f"; @launch kernel=k4_kernel grid=(64,1,1) block=(512,1,1) lds={K4_LDS}\n"
    s += '.amdgcn_target "amdgcn-amd-amdhsa--gfx950"\n.text\n'
    a = A()
    gen_k1(a); gen_k2(a); gen_k3(a); gen_k4(a)
    s += a.text()
    s += '.section .rodata,"a"\n'
    s += kd('k1_kernel', 128) + kd('k2_kernel', 128) + kd('k3_kernel', 128) + kd('k4_kernel', 64)
    return s

if __name__ == '__main__':
    out = sys.argv[1]
    if 'stamp' in FL:
        STAMP = True
    open(out, 'w').write(build())
```

```python
import sys

REF = 'recurrent_scan__compressed_kv_cla__moe_arch_mod__decode.s.ref'

WS_QA = 0x000000
WS_HH = 0x020000
WS_XN = 0x024000
WS_RS = 0x025000
WS_ML = 0x026000
WS_PART = 0x030000
WS_SP = 0x430000
WS_END = WS_SP + 512 * 8192
WS_GUP = WS_END
WS_UVT = WS_GUP + 16*4*3584*4
WS_HH2 = WS_UVT + 0x400000
WS_END2 = WS_HH2 + 32768

LOG2E = 0x3fb8aa3b
SCALE = 0x3db504f3
EPS = 0x3727c5ac


STAMP = False

class A:
    def __init__(self):
        self.l = []

    def e(self, s):
        for line in s.strip().split('\n'):
            line = line.strip()
            if line:
                self.l.append('    ' + line)

    def lab(self, s):
        self.l.append(s + ':')

    def srd(self, d, base, nbytes):
        self.e(f"s_mov_b32 s{d}, s{base}")
        self.e(f"s_and_b32 s{d+1}, s{base+1}, 0xffff")
        self.e(f"s_mov_b32 s{d+2}, {hex(nbytes)}")
        self.e(f"s_mov_b32 s{d+3}, 0x00020000")

    def wave_sum(self, v):
        for n in (1, 2, 4, 8):
            self.e("s_nop 1")
            self.e(f"v_add_f32_dpp v{v}, v{v}, v{v} row_shr:{n} row_mask:0xf bank_mask:0xf bound_ctrl:0")
        self.e("s_nop 1")
        self.e(f"v_add_f32_dpp v{v}, v{v}, v{v} row_bcast:15 row_mask:0xa bank_mask:0xf")
        self.e("s_nop 1")
        self.e(f"v_add_f32_dpp v{v}, v{v}, v{v} row_bcast:31 row_mask:0xc bank_mask:0xf")

    def rne(self, d, s):
        self.e(f"v_cvt_pk_bf16_f32 v{d}, v{s}, v{s}")
        self.e(f"v_and_b32 v{d}, 0xffff0000, v{d}")

    nst = 0
    def stamp(self):
        if not STAMP: return
        self.e(f"s_memtime s[{76+2*self.nst}:{77+2*self.nst}]")
        self.nst += 1

    def stamp_out(self, kidx):
        if not STAMP: return
        n = self.nst; self.nst = 0
        self.e("s_mov_b64 exec, -1")
        self.e("s_waitcnt lgkmcnt(0)")
        self.e(f"s_add_u32 s74, s2, {kidx*512}")
        self.e("s_lshl_b32 s74, s74, 4")
        self.e("s_add_u32 s74, s74, s52")
        self.e("s_lshl_b32 s74, s74, 7")
        self.e("s_add_u32 s74, s74, 0x2000000")
        self.e("s_mov_b32 s50, 0x10000000")
        self.e("v_mov_b32 v1, 0")
        for i in range(n):
            self.e(f"v_mov_b32 v2, s{76+2*i}")
            self.e(f"buffer_store_dword v2, v1, s[48:51], s74 offen offset:{4*i}")

    def text(self):
        return '\n'.join(self.l) + '\n'


def kd(name, vgpr, sgpr=96):
    acc = (vgpr + 3) // 4 * 4
    return f""".p2align 6
.amdhsa_kernel {name}
  .amdhsa_next_free_vgpr {vgpr}
  .amdhsa_next_free_sgpr {sgpr}
  .amdhsa_accum_offset {acc}
  .amdhsa_group_segment_fixed_size 0
  .amdhsa_kernarg_size 112
  .amdhsa_user_sgpr_count 2
  .amdhsa_user_sgpr_kernarg_segment_ptr 1
  .amdhsa_system_sgpr_workgroup_id_x 1
.end_amdhsa_kernel
"""


def head(a, name):
    a.l.append(f".globl {name}\n.p2align 8\n.type {name},@function\n{name}:")


NLOG2E = LOG2E ^ 0x80000000
FL = set(sys.argv[2:])
PFN = 8

def pack4(a, base):
    for k in range(1, 4):
        for r in range(4):
            a.e(f"v_mov_b32_dpp v{base+r}, v{base+4*k+r} row_shr:{4*k} row_mask:0xf bank_mask:{hex(1<<k)}")

def lanes(e):
    e("v_and_b32 v1, 63, v0")
    e("v_lshrrev_b32 v4, 6, v0")
    e("v_lshrrev_b32 v2, 4, v1")
    e("v_and_b32 v3, 15, v1")
    e("v_readfirstlane_b32 s52, v4")
    e("v_lshlrev_b32 v11, 4, v1")

def xreduce_rows(a, v, t, op):
    e = a.e
    e(f"v_mov_b32 v{t}, v{v}")
    e("s_nop 1")
    e(f"v_permlane32_swap_b32 v{v}, v{t}")
    e("s_nop 1")
    e(f"{op} v{v}, v{v}, v{t}")
    e(f"v_mov_b32 v{t}, v{v}")
    e("s_nop 1")
    e(f"v_permlane16_swap_b32 v{v}, v{t}")
    e("s_nop 1")
    e(f"{op} v{v}, v{v}, v{t}")

K1_GU = 131072
K1_XN = 147456
K1_QP = K1_XN + 4352
K1_FLG = K1_QP + 4608
K1_LDS = K1_FLG + 64

def gen_k1(a):
    head(a, 'k1_kernel')
    e = a.e
    e("s_cmp_ge_u32 s2, 256")
    e("s_cbranch_scc1 K1_END")
    a.stamp()
    e("s_load_dwordx2 s[4:5], s[0:1], 0")
    e("s_load_dwordx4 s[8:11], s[0:1], 16")
    e("s_load_dwordx2 s[12:13], s[0:1], 56")
    e("s_load_dwordx4 s[16:19], s[0:1], 64")
    e("s_load_dwordx2 s[20:21], s[0:1], 104")
    e("s_load_dwordx2 s[22:23], s[0:1], 32")
    e("s_load_dwordx2 s[6:7], s[0:1], 8")
    lanes(e)
    e("s_and_b32 s57, s2, 7")
    e("s_lshr_b32 s58, s2, 3")
    e("s_and_b32 s59, s58, 3")
    e("s_lshl_b32 s53, s57, 2")
    e("s_add_u32 s53, s53, s59")
    e("s_lshr_b32 s54, s2, 5")
    e("s_mov_b32 s56, 1")
    e("s_mov_b32 s59, s2")
    e("s_cmp_lt_u32 s2, 224")
    e("s_cbranch_scc1 K1_LGOK")
    e("s_mov_b32 s56, 0")
    e("s_sub_u32 s59, s2, 224")
    a.lab("K1_LGOK")
    e("s_mul_i32 s60, s59, 2341")
    e("s_lshr_b32 s55, s60, 16")
    e("s_mul_i32 s60, s55, 28")
    e("s_sub_u32 s66, s59, s60")
    e("v_lshrrev_b32 v5, 1, v3")
    e("v_sub_u32 v6, v5, v2")
    e("v_and_b32 v7, 7, v6")
    e("v_subrev_u32 v6, 4, v6")
    e("v_and_b32 v8, 7, v6")
    e("v_and_b32 v9, 1, v3")
    e("v_lshlrev_b32 v10, 13, v2")
    e("v_lshl_or_b32 v7, v7, 1, v9")
    e("v_lshl_or_b32 v8, v8, 1, v9")
    e("v_lshl_add_u32 v7, v7, 4, v10")
    e("v_lshl_add_u32 v8, v8, 4, v10")
    e("v_lshrrev_b32 v12, 3, v1")
    e("v_mul_u32_u24 v12, 3584, v12")
    e("v_and_b32 v15, 7, v1")
    e("v_lshl_add_u32 v12, v15, 4, v12")
    e("v_lshl_add_u32 v13, v3, 4, v10")
    e("s_lshl_b32 s68, s54, 1")
    e("s_add_u32 s68, s68, s52")
    e("s_and_b32 s68, s68, 15")
    e("s_lshl_b32 s62, s53, 8")
    e("s_lshl_b32 s61, s68, 18")
    e("s_add_u32 s61, s61, s62")
    e("s_lshl_b32 s63, s68, 13")
    e("s_waitcnt lgkmcnt(0)")
    a.srd(24, 4, 4096)
    a.srd(28, 8, 0x400000)
    a.srd(36, 12, 1024)
    e("s_cmp_ge_u32 s52, 4")
    e("s_cbranch_scc1 K1_NOX")
    e("s_lshl_b32 s60, s52, 10")
    e("buffer_load_dwordx4 v[16:19], v11, s[24:27], s60 offen")
    e("buffer_load_dwordx4 v[20:23], v11, s[36:39], 0 offen")
    a.lab("K1_NOX")
    for t in range(8):
        e(f"s_add_u32 m0, s63, {t*1024}")
        e(f"s_add_u32 s64, s61, {t*32768}")
        e(f"buffer_load_dwordx4 v{7 + ((t >> 1) & 1)}, s[28:31], s64 offen nt lds")
    a.srd(32, 10, 0x400000)
    a.srd(40, 16, 512 * 3584)
    a.srd(44, 18, 512 * 3584)
    a.srd(48, 20, WS_END2)
    a.srd(92, 22, 0x400000)
    e("s_cmp_lt_u32 s52, 12")
    e("s_cbranch_scc1 K1_NOLATE")
    e("s_sub_u32 s70, s52, 12")
    e("s_lshl_b32 s61, s54, 6")
    e("s_lshl_b32 s64, s70, 4")
    e("s_add_u32 s61, s61, s64")
    e("s_lshl_b32 s65, s61, 5")
    e("s_lshl_b32 s61, s61, 13")
    e("s_add_u32 s71, s61, s62")
    for u in range(4):
        e(f"s_add_u32 s64, s71, {u*4*8192}")
        e(f"buffer_load_dwordx4 v[{24+4*u}:{27+4*u}], v13, s[32:35], s64 offen nt")
    a.lab("K1_NOLATE")
    e("s_cmp_lt_u32 s52, 8")
    e("s_cbranch_scc1 K1_NOUV")
    e("s_cmp_ge_u32 s52, 12")
    e("s_cbranch_scc1 K1_NOUV")
    e("s_sub_u32 s70, s52, 8")
    e("s_lshl_b32 s61, s54, 6")
    e("s_lshl_b32 s64, s70, 4")
    e("s_add_u32 s61, s61, s64")
    e("s_lshl_b32 s65, s61, 5")
    e("s_lshl_b32 s61, s61, 13")
    e("s_add_u32 s71, s61, s62")
    e("s_lshl_b32 s60, s53, 17")
    e("s_add_u32 s60, s60, s65")
    e(f"s_add_u32 s70, s60, {WS_UVT}")
    a.lab("K1_NOUV")
    e("s_cmp_ge_u32 s52, 4")
    e("s_cbranch_scc1 K1_LNDONE")
    a.stamp()
    e("s_waitcnt vmcnt(8)")
    for i in range(4):
        e(f"v_lshlrev_b32 v{40+2*i}, 16, v{16+i}")
        e(f"v_and_b32 v{41+2*i}, 0xffff0000, v{16+i}")
    e("v_add_f32 v48, v40, v41")
    e("v_add_f32 v49, v42, v43")
    e("v_add_f32 v50, v44, v45")
    e("v_add_f32 v51, v46, v47")
    e("v_add_f32 v48, v48, v49")
    e("v_add_f32 v50, v50, v51")
    e("v_add_f32 v48, v48, v50")
    a.wave_sum(48)
    e("s_nop 1")
    e("v_readlane_b32 s70, v48, 63")
    e("v_mov_b32 v49, 0x3b000000")
    e("s_nop 1")
    e("v_mul_f32 v49, s70, v49")
    e("v_mov_b32 v50, 0")
    for i in range(8):
        e(f"v_sub_f32 v51, v{40+i}, v49")
        e("v_fmac_f32 v50, v51, v51")
    a.wave_sum(50)
    e("s_nop 1")
    e("v_readlane_b32 s71, v50, 63")
    e("v_mov_b32 v50, 0x3b000000")
    e("s_nop 1")
    e("v_mul_f32 v50, s71, v50")
    a.rne(49, 49)
    a.rne(50, 50)
    e(f"v_add_f32 v50, {hex(EPS)}, v50")
    a.rne(50, 50)
    e("v_sqrt_f32 v50, v50")
    e("s_nop 0")
    a.rne(50, 50)
    e("v_rcp_f32 v51, v50")
    e("s_nop 0")
    for i in range(8):
        r = 40 + i
        e(f"v_sub_f32 v{r}, v{r}, v49")
        a.rne(r, r)
        e(f"v_mul_f32 v52, v{r}, v51")
        e(f"v_fma_f32 v53, -v52, v50, v{r}")
        e(f"v_fma_f32 v{r}, v53, v51, v52")
    for i in range(4):
        e(f"v_cvt_pk_bf16_f32 v{52+i}, v{40+2*i}, v{41+2*i}")
    e("s_mul_i32 s60, s52, 1088")
    e(f"s_add_u32 s60, s60, {K1_XN}")
    e("v_add_u32 v56, s60, v11")
    e("ds_write_b128 v56, v[52:55]")
    e(f"v_mov_b32 v56, {K1_FLG}")
    e("v_mov_b32 v57, 0")
    e("ds_write_b32 v56, v57")
    e("s_cmp_lg_u32 s2, 0")
    e("s_cbranch_scc1 K1_LNDONE")
    e("s_lshl_b32 s60, s52, 10")
    e(f"s_add_u32 s60, s60, {WS_XN}")
    e("buffer_store_dwordx4 v[52:55], v11, s[48:51], s60 offen")
    e("v_mov_b32 v57, 0")
    for i in range(4):
        e(f"v_lshlrev_b32 v58, 16, v{52+i}")
        e(f"v_lshlrev_b32 v59, 16, v{20+i}")
        e("v_fmac_f32 v57, v58, v59")
        e(f"v_and_b32 v58, 0xffff0000, v{52+i}")
        e(f"v_and_b32 v59, 0xffff0000, v{20+i}")
        e("v_fmac_f32 v57, v58, v59")
    a.wave_sum(57)
    a.rne(57, 57)
    e(f"v_mul_f32 v58, {hex(NLOG2E)}, v57")
    e("v_exp_f32 v58, v58")
    e("s_nop 0")
    e("v_add_f32 v58, 1.0, v58")
    e("v_rcp_f32 v58, v58")
    e("s_nop 0")
    a.rne(58, 58)
    e("s_lshl_b32 s60, s52, 2")
    e(f"s_add_u32 s60, s60, {WS_RS}")
    e("v_mov_b32 v59, 0")
    e("v_cmp_eq_u32 vcc, 63, v1")
    e("s_and_saveexec_b64 s[74:75], vcc")
    e("buffer_store_dword v58, v59, s[48:51], s60 offen")
    e("s_mov_b64 exec, -1")
    a.lab("K1_LNDONE")
    e("v_and_b32 v4, 3, v3")
    e("v_mul_u32_u24 v4, 1088, v4")
    e("v_lshl_add_u32 v4, v2, 4, v4")
    e("s_lshr_b32 s69, s52, 3")
    e("s_lshl_b32 s60, s69, 9")
    e(f"s_add_u32 s60, s60, {K1_XN}")
    e("v_add_u32 v57, s60, v4")
    e("v_bfe_u32 v5, v1, 2, 2")
    e("v_and_b32 v6, 3, v1")
    e("v_and_b32 v9, 1, v2")
    e("v_lshl_add_u32 v9, v9, 2, v5")
    e("v_lshl_add_u32 v10, v2, 3, v5")
    e("v_lshlrev_b32 v14, 8, v10")
    e("v_lshl_add_u32 v14, v6, 3, v14")
    e("s_and_b32 s60, s52, 7")
    e("v_add_u32 v12, s60, v9")
    e("v_and_b32 v12, 7, v12")
    e("v_lshl_add_u32 v64, v12, 5, v14")
    e("s_lshl_b32 s60, s69, 16")
    e("v_add_u32 v64, s60, v64")
    e("v_lshlrev_b32 v12, 7, v10")
    e("v_lshl_add_u32 v72, v6, 3, v12")
    e("s_and_b32 s60, s52, 7")
    e("s_lshr_b32 s61, s60, 2")
    e("s_lshl_b32 s61, s61, 13")
    e("s_and_b32 s60, s60, 3")
    e("s_lshl_b32 s60, s60, 5")
    e("s_add_u32 s60, s60, s61")
    e(f"s_add_u32 s60, s60, {K1_GU}")
    e("v_add_u32 v72, s60, v72")
    e("s_lshl_b32 s61, s55, 7")
    e(f"s_add_u32 s61, s61, {K1_XN}")
    e("v_add_u32 v73, s61, v4")
    e("s_mul_i32 s60, s55, 4*3584*4")
    e("s_and_b32 s61, s52, 7")
    e("s_lshr_b32 s64, s61, 2")
    e("s_mul_i32 s64, s64, 1792*4")
    e("s_add_u32 s60, s60, s64")
    e("s_and_b32 s61, s61, 3")
    e("s_lshl_b32 s61, s61, 6")
    e("s_add_u32 s60, s60, s61")
    e("s_lshl_b32 s61, s66, 8")
    e("s_add_u32 s60, s60, s61")
    e(f"s_add_u32 s67, s60, {WS_GUP}")
    e("v_mul_u32_u24 v74, 3584*4, v3")
    e("v_lshl_add_u32 v74, v2, 4, v74")
    e("v_lshlrev_b32 v75, 9, v3")
    e("v_lshl_add_u32 v75, v2, 4, v75")
    e("v_and_b32 v5, 1, v3")
    e("v_lshl_add_u32 v75, v5, 4, v75")
    e("v_bfe_u32 v5, v3, 1, 1")
    e("v_lshl_add_u32 v75, v5, 7, v75")
    e("s_mul_i32 s60, s69, 2304")
    e("s_and_b32 s61, s52, 7")
    e("s_lshl_b32 s61, s61, 6")
    e("s_add_u32 s60, s60, s61")
    e(f"s_add_u32 s60, s60, {K1_QP}")
    e("v_add_u32 v75, s60, v75")
    e("v_cmp_gt_u32 vcc, 4, v3")
    e("s_mov_b64 s[72:73], vcc")
    e("s_waitcnt lgkmcnt(0)")
    e("s_barrier")
    a.stamp()
    e("s_cmp_ge_u32 s52, 4")
    e("s_cbranch_scc1 K1_NOGU2")
    e("v_lshrrev_b32 v12, 3, v1")
    e("v_mul_u32_u24 v12, 3584, v12")
    e("v_and_b32 v15, 7, v1")
    e("v_lshl_add_u32 v12, v15, 4, v12")
    e("s_lshl_b32 s61, s55, 1")
    e("s_and_b32 s64, s52, 1")
    e("s_add_u32 s61, s61, s64")
    e("s_mul_i32 s61, s61, 32*3584")
    e("s_lshl_b32 s64, s66, 7")
    e("s_add_u32 s61, s61, s64")
    e("s_lshl_b32 s64, s52, 12")
    e("s_cmp_ge_u32 s52, 2")
    e("s_cbranch_scc1 K1_UPDMA")
    for u in range(4):
        e(f"s_add_u32 m0, s64, {K1_GU + u*1024}")
        e(f"s_add_u32 s65, s61, {u*8*3584}")
        e("buffer_load_dwordx4 v12, s[40:43], s65 offen nt lds")
    e("s_branch K1_NOGU2")
    a.lab("K1_UPDMA")
    for u in range(4):
        e(f"s_add_u32 m0, s64, {K1_GU + u*1024}")
        e(f"s_add_u32 s65, s61, {u*8*3584}")
        e("buffer_load_dwordx4 v12, s[44:47], s65 offen nt lds")
    a.lab("K1_NOGU2")
    def xf(s): return 40 + 4*s if s < 4 else 80 + 4*(s-4)
    for s in range(8):
        e(f"ds_read_b128 v[{xf(s)}:{xf(s)+3}], v57 offset:{64*s}")
    e("s_cmp_ge_u32 s52, 8")
    e("s_cbranch_scc1 K1_NOGX")
    e("ds_read_b128 v[16:19], v73")
    e("ds_read_b128 v[20:23], v73 offset:64")
    a.lab("K1_NOGX")
    e("s_sub_u32 s60, s52, 4")
    e("s_cmp_lt_u32 s60, 8")
    e("s_cbranch_scc1 K1_W0")
    e("s_waitcnt vmcnt(4)")
    e("s_branch K1_W1")
    a.lab("K1_W0")
    e("s_waitcnt vmcnt(0)")
    a.lab("K1_W1")
    e("s_waitcnt lgkmcnt(0)")
    e("s_barrier")
    a.stamp()
    e("s_cmp_lt_u32 s52, 8")
    e("s_cbranch_scc1 K1_NOUV2")
    e("s_cmp_ge_u32 s52, 12")
    e("s_cbranch_scc1 K1_NOUV2")
    for u in range(4):
        e(f"s_add_u32 s64, s71, {u*4*8192}")
        e(f"buffer_load_dwordx4 v[{24+4*u}:{27+4*u}], v13, s[92:95], s64 offen nt")
    a.lab("K1_NOUV2")
    if 'nopf' not in FL:
        e("s_sub_u32 s60, s52, 4")
        e("s_cmp_ge_u32 s60, 4")
        e("s_cbranch_scc1 K1_NOPF")
        a.srd(24, 6, 0x1000000)
        e("s_lshr_b32 s61, s58, 1")
        e("s_lshl_b32 s64, s57, 4")
        e("s_add_u32 s61, s61, s64")
        e("s_lshl_b32 s61, s61, 2")
        e("s_and_b32 s64, s58, 1")
        e("s_add_u32 s61, s61, s64")
        e("s_lshl_b32 s61, s61, 15")
        e("s_lshl_b32 s64, s60, 13")
        e("s_add_u32 s61, s61, s64")
        for u in range(PFN):
            e(f"s_add_u32 s64, s61, {u*1024}")
            e(f"buffer_load_dwordx4 v[24:27], v11, s[24:27], s64 offen")
        a.lab("K1_NOPF")
    for s in range(8):
        e(f"ds_read_b64_tr_b16 v[{96+4*s}:{97+4*s}], v64 offset:{s*8192}")
        e(f"ds_read_b64_tr_b16 v[{98+4*s}:{99+4*s}], v64 offset:{s*8192+1024}")
    for s in range(8):
        e(f"s_waitcnt lgkmcnt({14 - 2*s})")
        c = "v[76:79]" if s else "0"
        e(f"v_mfma_f32_16x16x32_bf16 v[76:79], v[{96+4*s}:{99+4*s}], v[{xf(s)}:{xf(s)+3}], {c}")
    e("s_cmp_lt_u32 s52, 12")
    e("s_cbranch_scc1 K1_W2")
    e("s_waitcnt vmcnt(0)")
    a.lab("K1_W2")
    e("s_mov_b64 exec, s[72:73]")
    e("s_nop 5")
    e("ds_write_b128 v75, v[76:79]")
    e("s_mov_b64 exec, -1")
    e("s_waitcnt lgkmcnt(0)")
    e("s_barrier")
    a.stamp()
    e("s_cmp_ge_u32 s52, 12")
    e("s_cbranch_scc1 K1_QA")
    e("s_cmp_ge_u32 s52, 8")
    e("s_cbranch_scc1 K1_UVST")
    e("s_cmp_eq_u32 s56, 0")
    e("s_cbranch_scc1 K1_FIN")
    e(f"v_mov_b32 v5, {K1_FLG}")
    e("s_cmp_ge_u32 s52, 4")
    e("s_cbranch_scc1 K1_GUPOLL")
    e("s_waitcnt vmcnt(0)")
    e("v_mov_b32 v6, 1")
    e("s_mov_b64 exec, 1")
    e("ds_add_u32 v5, v6")
    e("s_mov_b64 exec, -1")
    a.lab("K1_GUPOLL")
    e("ds_read_b32 v6, v5")
    e("s_waitcnt lgkmcnt(0)")
    e("v_readfirstlane_b32 s60, v6")
    e("s_cmp_ge_u32 s60, 4")
    e("s_cbranch_scc1 K1_GUGO")
    e("s_sleep 1")
    e("s_branch K1_GUPOLL")
    a.lab("K1_GUGO")
    e("ds_read_b64_tr_b16 v[96:97], v72")
    e("ds_read_b64_tr_b16 v[98:99], v72 offset:512")
    e("ds_read_b64_tr_b16 v[100:101], v72 offset:4096")
    e("ds_read_b64_tr_b16 v[102:103], v72 offset:4608")
    e("s_waitcnt lgkmcnt(2)")
    e("v_mfma_f32_16x16x32_bf16 v[76:79], v[96:99], v[16:19], 0")
    e("s_waitcnt lgkmcnt(0)")
    e("v_mfma_f32_16x16x32_bf16 v[76:79], v[100:103], v[20:23], v[76:79]")
    e("s_mov_b64 exec, s[72:73]")
    e("s_nop 7")
    e("buffer_store_dwordx4 v[76:79], v74, s[48:51], s67 offen")
    e("s_branch K1_FIN")
    a.lab("K1_UVST")
    e("v_lshrrev_b32 v15, 1, v3")
    e("v_lshlrev_b32 v15, 14, v15")
    e("v_lshl_add_u32 v15, v2, 5, v15")
    e("v_and_b32 v5, 1, v3")
    e("v_lshl_add_u32 v15, v5, 4, v15")
    e("s_waitcnt vmcnt(0)")
    for u in range(4):
        e(f"buffer_store_dwordx4 v[{24+4*u}:{27+4*u}], v15, s[48:51], s70 offen offset:{128*u}")
    e("s_branch K1_FIN")
    a.lab("K1_QA")
    e("s_setprio 3")
    e("s_sub_u32 s70, s52, 12")
    e("s_lshl_b32 s60, s70, 12")
    for u in range(4):
        e(f"v_add_u32 v5, {4*u}, v2")
        e("v_xor_b32 v6, v5, v3")
        e("v_lshlrev_b32 v5, 8, v5")
        e("v_lshl_add_u32 v5, v6, 4, v5")
        e("v_add_u32 v5, s60, v5")
        e(f"ds_write_b128 v5, v[{24+4*u}:{27+4*u}]")
    e("v_and_b32 v4, 3, v3")
    e("v_lshlrev_b32 v4, 9, v4")
    e("v_lshl_add_u32 v4, v2, 5, v4")
    e("v_and_b32 v5, 1, v3")
    e("v_lshl_add_u32 v4, v5, 4, v4")
    e("v_bfe_u32 v5, v3, 1, 1")
    e("v_lshl_add_u32 v4, v5, 7, v4")
    e(f"v_add_u32 v4, {K1_QP}, v4")
    for s in range(4):
        for k in range(2):
            e(f"ds_read_b128 v[{40+16*s+8*k}:{43+16*s+8*k}], v4 offset:{2304*k + 128*s}")
            e(f"ds_read_b128 v[{44+16*s+8*k}:{47+16*s+8*k}], v4 offset:{2304*k + 128*s + 16}")
    e("v_lshlrev_b32 v5, 8, v3")
    e("v_add_u32 v5, s60, v5")
    for s in range(4):
        e(f"v_add_u32 v6, {4*s}, v2")
        e("v_xor_b32 v6, v6, v3")
        e("v_lshl_add_u32 v6, v6, 4, v5")
        e(f"ds_read_b128 v[{24+4*s}:{27+4*s}], v6")
    e("s_lshr_b32 s60, s53, 4")
    e("s_lshl_b32 s60, s60, 4")
    e("s_lshl_b32 s61, s54, 1")
    e("s_add_u32 s60, s60, s61")
    e("s_lshr_b32 s61, s70, 1")
    e("s_add_u32 s60, s60, s61")
    e("s_lshl_b32 s60, s60, 10")
    e("s_and_b32 s61, s70, 1")
    e("s_lshl_b32 s61, s61, 9")
    e("s_add_u32 s60, s60, s61")
    e("s_and_b32 s61, s53, 15")
    e("s_lshl_b32 s61, s61, 4")
    e("s_add_u32 s60, s60, s61")
    e(f"s_add_u32 s60, s60, {WS_QA}")
    e("v_lshlrev_b32 v4, 15, v3")
    e("v_lshrrev_b32 v5, 1, v2")
    e("v_lshl_add_u32 v4, v5, 8, v4")
    e("v_and_b32 v5, 1, v2")
    e("v_lshl_add_u32 v4, v5, 3, v4")
    e("s_waitcnt lgkmcnt(4)")
    for s in range(4):
        for i in range(8):
            e(f"v_add_f32 v{40+16*s+i}, v{40+16*s+i}, v{48+16*s+i}")
        for i in range(4):
            e(f"v_cvt_pk_bf16_f32 v{104+4*s+i}, v{40+16*s+2*i}, v{41+16*s+2*i}")
    e("s_waitcnt lgkmcnt(0)")
    e("s_nop 0")
    for s in range(4):
        c = "v[120:123]" if s else "0"
        e(f"v_mfma_f32_16x16x32_bf16 v[120:123], v[{24+4*s}:{27+4*s}], v[{104+4*s}:{107+4*s}], {c}")
    e("s_nop 7")
    e("v_cvt_pk_bf16_f32 v124, v120, v121")
    e("v_cvt_pk_bf16_f32 v125, v122, v123")
    e("s_mov_b64 exec, s[72:73]")
    e("buffer_store_dwordx2 v[124:125], v4, s[48:51], s60 offen")
    a.lab("K1_FIN")
    a.stamp()
    a.stamp_out(0)
    a.lab("K1_END")
    e("s_endpgm")

K2_QAI = 131072
K2_PI = K2_QAI + 16384
K2_MX = K2_PI + 4096
K2_LS = K2_MX + 512
K2_OI = 0
K2_LDS = K2_LS + 512

def gen_k2(a):
    head(a, 'k2_kernel')
    e = a.e
    e("s_cmp_ge_u32 s2, 256")
    e("s_cbranch_scc1 K2_END")
    a.stamp()
    e("s_load_dwordx2 s[4:5], s[0:1], 8")
    e("s_load_dwordx2 s[20:21], s[0:1], 104")
    lanes(e)
    e("s_and_b32 s57, s2, 7")
    e("s_lshr_b32 s58, s2, 3")
    e("s_and_b32 s53, s58, 1")
    e("s_lshr_b32 s58, s58, 1")
    e("s_lshl_b32 s57, s57, 4")
    e("s_add_u32 s58, s58, s57")
    e("s_lshr_b32 s54, s58, 5")
    e("s_and_b32 s59, s52, 1")
    e("s_lshl_b32 s59, s59, 7")
    e("v_xor_b32 v12, s59, v11")
    for f in range(1, 4):
        e(f"v_xor_b32 v{12+f}, {f*32}, v12")
    e("s_lshl_b32 s60, s58, 17")
    e("s_lshl_b32 s61, s52, 13")
    e("s_add_u32 s60, s60, s61")
    e("s_lshl_b32 s63, s54, 1")
    e("s_add_u32 s63, s63, s53")
    e("s_lshl_b32 s63, s63, 14")
    e("s_lshl_b32 s64, s52, 10")
    e("s_add_u32 s63, s63, s64")
    e(f"s_add_u32 s63, s63, {WS_QA}")
    e("s_waitcnt lgkmcnt(0)")
    a.srd(24, 4, 0x1000000)
    a.srd(48, 20, WS_END2)
    e(f"s_add_u32 m0, s64, {K2_QAI}")
    e("s_nop 0")
    e("buffer_load_dwordx4 v11, s[48:51], s63 offen lds")
    for u in range(8):
        e(f"s_add_u32 m0, s61, {u*1024}")
        e(f"s_add_u32 s62, s60, {u*1024}")
        e(f"buffer_load_dwordx4 v{12 + (u & 3)}, s[24:27], s62 offen nt lds")
    e("s_cmp_lg_u32 s52, 15")
    e("s_cbranch_scc1 K2_NODN")
    e("v_and_b32 v4, 7, v1")
    e("v_min_u32 v4, 6, v4")
    e("v_bfe_u32 v5, v1, 3, 1")
    e("v_mul_u32_u24 v5, 1792, v5")
    e("v_add_u32 v4, v4, v5")
    e("v_mul_u32_u24 v5, 3584, v2")
    e("v_add_u32 v4, v4, v5")
    e("v_lshlrev_b32 v4, 2, v4")
    e("s_mul_i32 s65, s2, 28")
    e(f"s_add_u32 s65, s65, {WS_GUP}")
    for k in range(8):
        e(f"s_add_u32 s66, s65, {k*4*3584*4}")
        e(f"buffer_load_dword v{108+k}, v4, s[48:51], s66 offen")
    a.lab("K2_NODN")
    a.stamp()
    e("v_and_b32 v4, 8, v3")
    e("v_and_b32 v5, 3, v3")
    e("v_lshl_or_b32 v4, v5, 1, v4")
    e("v_and_b32 v5, 2, v4")
    e("v_xor_b32 v5, v5, v2")
    e("v_and_b32 v4, 12, v4")
    e("v_lshlrev_b32 v6, 10, v3")
    e("v_lshl_add_u32 v6, v5, 4, v6")
    e("s_lshl_b32 s61, s52, 14")
    e("v_add_u32 v6, s61, v6")
    for q in range(4):
        e(f"v_xor_b32 v7, {4*q}, v4")
        e(f"v_lshl_add_u32 v{20+q}, v7, 4, v6")
    e("v_bfe_u32 v4, v1, 2, 2")
    e("v_and_b32 v5, 3, v1")
    e("v_lshl_add_u32 v6, v2, 3, v4")
    e("v_lshlrev_b32 v6, 10, v6")
    e("v_and_b32 v8, 1, v5")
    e("v_lshl_add_u32 v6, v8, 3, v6")
    e("v_and_b32 v7, 1, v2")
    e("v_lshlrev_b32 v7, 3, v7")
    e("v_lshl_or_b32 v7, v4, 1, v7")
    e("v_lshrrev_b32 v8, 1, v5")
    e("s_lshl_b32 s62, s52, 2")
    e("v_add_u32 v8, s62, v8")
    for ct in range(2):
        e(f"v_add_u32 v9, {2*ct}, v8")
        e("v_xor_b32 v9, v9, v7")
        e(f"v_lshl_add_u32 v{24+ct}, v9, 4, v6")
        e(f"v_add_u32 v{26+ct}, 0x10000, v{24+ct}")
    e("v_lshlrev_b32 v38, 5, v3")
    e(f"s_mov_b32 s63, {hex(SCALE)}")
    e(f"s_mov_b32 s64, {hex(LOG2E)}")
    e("s_cmp_eq_u32 s52, 15")
    e("s_cbranch_scc1 K2_W15")
    e("s_waitcnt vmcnt(8)")
    e("s_barrier")
    e("s_cmp_ge_u32 s52, 8")
    e("s_cbranch_scc1 K2_NOPRE")
    e(f"v_add_u32 v4, {K2_QAI}, v11")
    for s in range(16):
        e(f"ds_read_b128 v[{64+4*s}:{67+4*s}], v4 offset:{1024*s}")
    a.lab("K2_NOPRE")
    e("s_waitcnt vmcnt(0)")
    e("s_branch K2_BARA")
    a.lab("K2_W15")
    e("s_waitcnt vmcnt(16)")
    e("s_barrier")
    e("s_waitcnt vmcnt(8)")
    a.lab("K2_BARA")
    e("s_barrier")
    a.stamp()
    e("s_cmp_ge_u32 s52, 8")
    e("s_cbranch_scc1 K2_NOQK")
    for s in range(6):
        e(f"ds_read_b128 v[{40+4*s}:{43+4*s}], v{20 + (s & 3)} offset:{256*(s >> 2)}")
    for s in range(16):
        outstanding_after = min(5, 15 - s)
        e(f"s_waitcnt lgkmcnt({outstanding_after})")
        c = "v[32:35]" if s else "0"
        r = 40 + 4 * (s % 6)
        e(f"v_mfma_f32_16x16x32_bf16 v[32:35], v[{r}:{r+3}], v[{64+4*s}:{67+4*s}], {c}")
        if s + 6 < 16:
            s2 = s + 6
            e("s_nop 0")
            e(f"ds_read_b128 v[{r}:{r+3}], v{20 + (s2 & 3)} offset:{256*(s2 >> 2)}")
    e("s_nop 7")
    for r in range(4):
        a.rne(32 + r, 32 + r)
        e(f"v_mul_f32 v{32+r}, s63, v{32+r}")
        a.rne(32 + r, 32 + r)
    e("v_max_f32 v36, v32, v33")
    e("v_max3_f32 v36, v36, v34, v35")
    xreduce_rows(a, 36, 37, "v_max_f32")
    e("s_lshl_b32 s62, s52, 2")
    e(f"s_add_u32 s62, s62, {K2_MX}")
    e("v_add_u32 v39, s62, v38")
    e("ds_write_b32 v39, v36")
    e("s_waitcnt lgkmcnt(0)")
    e("s_barrier")
    e(f"v_add_u32 v39, {K2_MX}, v38")
    e("ds_read_b128 v[40:43], v39")
    e("ds_read_b128 v[44:47], v39 offset:16")
    e("s_waitcnt lgkmcnt(0)")
    e("v_max3_f32 v40, v40, v41, v42")
    e("v_max3_f32 v44, v44, v45, v46")
    e("v_max3_f32 v40, v40, v43, v47")
    e("v_max_f32 v40, v40, v44")
    for r in range(4):
        e(f"v_sub_f32 v{32+r}, v{32+r}, v40")
        e(f"v_mul_f32 v{32+r}, s64, v{32+r}")
        e(f"v_exp_f32 v{32+r}, v{32+r}")
    e("s_nop 0")
    e("v_add_f32 v36, v32, v33")
    e("v_add_f32 v37, v34, v35")
    e("v_add_f32 v36, v36, v37")
    e("v_cvt_pk_bf16_f32 v42, v32, v33")
    e("v_cvt_pk_bf16_f32 v43, v34, v35")
    e("s_lshl_b32 s62, s52, 9")
    e(f"s_add_u32 s62, s62, {K2_PI}")
    e("v_lshrrev_b32 v44, 1, v2")
    e("v_lshlrev_b32 v44, 8, v44")
    e("v_lshl_add_u32 v44, v3, 4, v44")
    e("v_and_b32 v45, 1, v2")
    e("v_lshl_add_u32 v44, v45, 3, v44")
    e("v_add_u32 v44, s62, v44")
    e("ds_write_b64 v44, v[42:43]")
    xreduce_rows(a, 36, 37, "v_add_f32")
    e("s_lshl_b32 s62, s52, 2")
    e(f"s_add_u32 s62, s62, {K2_LS}")
    e("v_add_u32 v39, s62, v38")
    e("ds_write_b32 v39, v36")
    e("s_branch K2_PV0")
    a.lab("K2_NOQK")
    e("s_cmp_lg_u32 s52, 15")
    e("s_cbranch_scc1 K2_NOHH")
    e("s_waitcnt vmcnt(0)")
    for k in range(1, 8):
        e(f"v_add_f32 v108, v108, v{108+k}")
    a.rne(108, 108)
    e("v_mov_b32 v109, v108")
    e("s_nop 1")
    e("v_mov_b32_dpp v109, v108 row_shl:8 row_mask:0xf bank_mask:0xf")
    e(f"v_mul_f32 v110, {hex(NLOG2E)}, v108")
    e("v_exp_f32 v110, v110")
    e("s_nop 0")
    e("v_add_f32 v110, 1.0, v110")
    e("v_rcp_f32 v110, v110")
    e("s_nop 0")
    e("v_mul_f32 v108, v108, v110")
    a.rne(108, 108)
    e("v_mul_f32 v108, v108, v109")
    e("v_cvt_pk_bf16_f32 v108, v108, v108")
    e("v_cmp_gt_u32 vcc, 7, v3")
    e("s_nop 1")
    e("v_cndmask_b32 v108, 0, v108, vcc")
    e("v_lshlrev_b32 v109, 1, v1")
    e("s_lshl_b32 s65, s2, 7")
    e(f"s_add_u32 s65, s65, {WS_HH2}")
    e("buffer_store_short v108, v109, s[48:51], s65 offen")
    a.lab("K2_NOHH")
    e("s_barrier")
    a.lab("K2_PV0")
    for ks in range(4):
        for ct in range(2):
            base = (24 if ks < 2 else 26) + ct
            off = (ks & 1) * 32768
            r = 64 + 4 * (2 * ks + ct)
            e(f"ds_read_b64_tr_b16 v[{r}:{r+1}], v{base} offset:{off}")
            e(f"ds_read_b64_tr_b16 v[{r+2}:{r+3}], v{base} offset:{off+4096}")
    e("s_waitcnt lgkmcnt(0)")
    e("s_barrier")
    a.stamp()
    e(f"v_add_u32 v4, {K2_PI}, v11")
    for ks in range(4):
        e(f"ds_read_b128 v[{48+4*ks}:{51+4*ks}], v4 offset:{1024*ks}")
    for ks in range(4):
        e(f"s_waitcnt lgkmcnt({3-ks})")
        for ct in range(2):
            r = 64 + 4 * (2 * ks + ct)
            c = f"v[{96+4*ct}:{99+4*ct}]" if ks else "0"
            e(f"v_mfma_f32_16x16x32_bf16 v[{96+4*ct}:{99+4*ct}], v[{r}:{r+3}], v[{48+4*ks}:{51+4*ks}], {c}")
    e("v_mul_u32_u24 v4, 1040, v3")
    e("v_lshl_add_u32 v4, v2, 3, v4")
    e("s_lshl_b32 s61, s52, 6")
    e(f"s_add_u32 s61, s61, {K2_OI}")
    e("v_add_u32 v4, s61, v4")
    e("s_nop 2")
    for ct in range(2):
        e(f"v_cvt_pk_bf16_f32 v{104+2*ct}, v{96+4*ct}, v{97+4*ct}")
        e(f"v_cvt_pk_bf16_f32 v{105+2*ct}, v{98+4*ct}, v{99+4*ct}")
        e(f"ds_write_b64 v4, v[{104+2*ct}:{105+2*ct}] offset:{32*ct}")
    e("s_mul_i32 s61, s52, 1040")
    e(f"s_add_u32 s61, s61, {K2_OI}")
    e("v_add_u32 v4, s61, v11")
    e("s_lshl_b32 s60, s53, 4")
    e("s_add_u32 s60, s60, s52")
    e("s_lshl_b32 s60, s60, 17")
    e("s_lshl_b32 s61, s58, 10")
    e("s_add_u32 s60, s60, s61")
    e(f"s_add_u32 s60, s60, {WS_PART}")
    e("s_waitcnt lgkmcnt(0)")
    e("s_barrier")
    e("ds_read_b128 v[104:107], v4")
    e("s_waitcnt lgkmcnt(0)")
    e("buffer_store_dwordx4 v[104:107], v11, s[48:51], s60 offen " + ('nt' if 'stnt' in FL else '') + (' sc0 sc1' if 'stsc' in FL else ''))
    a.stamp()
    e("s_cmp_lg_u32 s52, 0")
    e("s_cbranch_scc1 K2_FIN")
    e(f"v_add_u32 v39, {K2_LS}, v38")
    e("ds_read_b128 v[88:91], v39")
    e("ds_read_b128 v[92:95], v39 offset:16")
    e("s_waitcnt lgkmcnt(0)")
    e("v_add_f32 v88, v88, v89")
    e("v_add_f32 v90, v90, v91")
    e("v_add_f32 v92, v92, v93")
    e("v_add_f32 v94, v94, v95")
    e("v_add_f32 v88, v88, v90")
    e("v_add_f32 v92, v92, v94")
    e("v_add_f32 v41, v88, v92")
    e("s_lshl_b32 s60, s53, 14")
    e("s_lshl_b32 s61, s58, 3")
    e("s_add_u32 s60, s60, s61")
    e(f"s_add_u32 s60, s60, {WS_ML}")
    e("v_lshlrev_b32 v4, 10, v3")
    e("v_cmp_gt_u32 vcc, 16, v1")
    e("s_and_saveexec_b64 s[72:73], vcc")
    e("buffer_store_dwordx2 v[40:41], v4, s[48:51], s60 offen")
    a.lab("K2_FIN")
    a.stamp()
    a.stamp_out(1)
    a.lab("K2_END")
    e("s_endpgm")


K3_UV = 0
K3_WO = 16384
K3_CL = 32768
K3_CP = K3_CL + 4352
K3_WD = K3_CP + 1024
K3_GS = K3_WD + 8192
K3_LDS = K3_GS + 4096

def gen_k3(a):
    head(a, 'k3_kernel')
    e = a.e
    e("s_cmp_ge_u32 s2, 256")
    e("s_cbranch_scc1 K3_END")
    a.stamp()
    e("s_load_dwordx2 s[10:11], s[0:1], 40")
    e("s_load_dwordx2 s[12:13], s[0:1], 80")
    e("s_load_dwordx2 s[20:21], s[0:1], 104")
    lanes(e)
    e("v_and_b32 v14, 3, v3")
    e("v_lshlrev_b32 v14, 5, v14")
    e("v_lshl_add_u32 v14, v2, 3, v14")
    e("v_cmp_gt_u32 vcc, 4, v3")
    e("s_mov_b64 s[72:73], vcc")
    e("s_and_b32 s57, s2, 7")
    e("s_lshr_b32 s58, s2, 3")
    e("s_and_b32 s59, s58, 3")
    e("s_lshl_b32 s53, s57, 2")
    e("s_add_u32 s53, s53, s59")
    e("s_lshr_b32 s54, s58, 2")
    e("s_lshl_b32 s69, s54, 1")
    e("s_add_u32 s69, s69, s52")
    e("s_and_b32 s69, s69, 15")
    e("s_lshr_b32 s55, s69, 2")
    e("s_lshl_b32 s60, s53, 2")
    e("s_add_u32 s60, s60, s55")
    e("v_lshlrev_b32 v12, 10, v2")
    e("v_lshl_add_u32 v12, v3, 4, v12")
    e("v_and_b32 v4, 31, v1")
    e("v_lshlrev_b32 v4, 3, v4")
    e("s_waitcnt lgkmcnt(0)")
    a.srd(48, 20, WS_END2)
    a.srd(28, 10, 0x400000)
    a.srd(32, 12, 1792 * 1024)
    e("s_cmp_ge_u32 s52, 4")
    e("s_cbranch_scc1 K3_NOUVT")
    e("s_lshl_b32 s70, s52, 12")
    e("s_lshl_b32 s61, s53, 3")
    e("s_add_u32 s61, s61, s54")
    e("s_lshl_b32 s61, s61, 14")
    e("s_add_u32 s61, s61, s70")
    e(f"s_add_u32 s61, s61, {WS_UVT}")
    for u in range(4):
        e(f"s_add_u32 m0, s70, {K3_UV + u*1024}")
        e(f"s_add_u32 s63, s61, {u*1024}")
        e("buffer_load_dwordx4 v11, s[48:51], s63 offen lds")
    a.lab("K3_NOUVT")
    e("s_lshl_b32 s61, s60, 8")
    e(f"s_add_u32 s61, s61, {WS_ML}")
    e("buffer_load_dwordx2 v[16:17], v4, s[48:51], s61 offen")
    e("s_lshl_b32 s65, s2, 7")
    e(f"s_add_u32 s65, s65, {WS_HH2}")
    e("buffer_load_dwordx2 v[22:23], v14, s[48:51], s65 offen")
    e("s_lshl_b32 s61, s60, 15")
    e("s_and_b32 s62, s69, 3")
    e("s_lshl_b32 s63, s62, 8")
    e("s_add_u32 s61, s61, s63")
    e(f"s_add_u32 s61, s61, {WS_PART}")
    for u in range(8):
        e(f"s_add_u32 s63, s61, {u*4096}")
        e(f"buffer_load_dwordx4 v[{64+4*u}:{67+4*u}], v12, s[48:51], s63 offen")
    e("s_cmp_lt_u32 s52, 12")
    e("s_cbranch_scc1 K3_NOCOLD")
    e("s_sub_u32 s71, s52, 12")
    e("s_lshl_b32 s70, s71, 12")
    e("s_lshl_b32 s61, s53, 7")
    e("s_lshl_b32 s63, s54, 4")
    e("s_add_u32 s61, s61, s63")
    e("s_lshl_b32 s63, s71, 2")
    e("s_add_u32 s61, s61, s63")
    e("s_lshl_b32 s61, s61, 10")
    e("s_and_b32 s63, s71, 1")
    e("s_lshl_b32 s63, s63, 7")
    for u in range(4):
        e(f"s_add_u32 s64, s63, {u*32}")
        e("v_xor_b32 v6, s64, v11")
        e(f"s_add_u32 m0, s70, {K3_WO + u*1024}")
        e(f"s_add_u32 s65, s61, {u*1024}")
        e("buffer_load_dwordx4 v6, s[28:31], s65 offen nt lds")
    e("s_mul_i32 s65, s2, 7168")
    for r in range(2):
        e("s_lshl_b32 s66, s71, 1")
        e(f"s_add_u32 s66, s66, {r}")
        e("s_min_u32 s66, s66, 6")
        e("s_lshl_b32 s67, s66, 5")
        e("v_xor_b32 v6, s67, v11")
        e("s_lshl_b32 s66, s66, 10")
        e(f"s_add_u32 m0, s66, {K3_WD}")
        e("s_add_u32 s66, s66, s65")
        e("buffer_load_dwordx4 v6, s[32:35], s66 offen nt lds")
    a.lab("K3_NOCOLD")
    a.stamp()
    e("v_lshlrev_b32 v13, 2, v2")
    for extra, lab in ((6, "K3_CA"), (0, "K3_CB")):
        if extra:
            e("s_cmp_lt_u32 s52, 12")
            e("s_cbranch_scc1 K3_CB")
        else:
            a.lab("K3_CB")
        e(f"s_waitcnt vmcnt({8+extra})")
        e("v_mov_b32 v18, v16")
        for n in (1, 2, 4, 8):
            e("s_nop 1")
            e(f"v_max_f32_dpp v18, v18, v18 row_shr:{n} row_mask:0xf bank_mask:0xf")
        e("s_nop 1")
        e("v_readlane_b32 s64, v18, 15")
        e("v_readlane_b32 s65, v18, 31")
        e("s_nop 1")
        e("v_mov_b32 v18, s64")
        e("v_max_f32 v18, s65, v18")
        e("v_sub_f32 v19, v16, v18")
        e(f"v_mul_f32 v19, {hex(LOG2E)}, v19")
        e("v_exp_f32 v19, v19")
        e("s_nop 0")
        e("v_mul_f32 v20, v19, v17")
        for n in (1, 2, 4, 8):
            e("s_nop 1")
            e(f"v_add_f32_dpp v20, v20, v20 row_shr:{n} row_mask:0xf bank_mask:0xf bound_ctrl:0")
        e("s_nop 1")
        e("v_readlane_b32 s64, v20, 15")
        e("v_readlane_b32 s65, v20, 31")
        e("s_nop 1")
        e("v_mov_b32 v20, s64")
        e("v_add_f32 v20, s65, v20")
        e("v_rcp_f32 v20, v20")
        e("s_nop 0")
        e("v_mul_f32 v19, v19, v20")
        for u in range(8):
            e(f"ds_bpermute_b32 v{48+u}, v13, v19 offset:{16*u}")
        for u in range(8):
            e(f"s_waitcnt vmcnt({7-u+extra}) lgkmcnt({7-u})")
            for i in range(4):
                e(f"v_lshlrev_b32 v40, 16, v{64+4*u+i}")
                e(f"v_and_b32 v41, 0xffff0000, v{64+4*u+i}")
                if u == 0:
                    e(f"v_mul_f32 v{24+2*i}, v{48+u}, v40")
                    e(f"v_mul_f32 v{25+2*i}, v{48+u}, v41")
                else:
                    e(f"v_fmac_f32 v{24+2*i}, v{48+u}, v40")
                    e(f"v_fmac_f32 v{25+2*i}, v{48+u}, v41")

        if extra:
            e("s_branch K3_CC")
    a.lab("K3_CC")
    a.stamp()
    for sw in ("v_permlane32_swap_b32", "v_permlane16_swap_b32"):
        for i in range(8):
            e(f"v_mov_b32 v{32+i}, v{24+i}")
        e("s_nop 0")
        for i in range(8):
            e(f"{sw} v{24+i}, v{32+i}")
        e("s_nop 0")
        for i in range(8):
            e(f"v_add_f32 v{24+i}, v{24+i}, v{32+i}")
    for i in range(4):
        e(f"v_cvt_pk_bf16_f32 v{32+i}, v{24+2*i}, v{25+2*i}")
    e("s_mul_i32 s64, s55, 1088")
    e("s_lshl_b32 s65, s62, 8")
    e("s_add_u32 s64, s64, s65")
    e(f"s_add_u32 s64, s64, {K3_CL}")
    e("v_lshl_add_u32 v4, v3, 4, s64")
    e("ds_write_b128 v4, v[32:35]")
    e("v_and_b32 v6, 3, v3")
    e("v_mul_u32_u24 v6, 1088, v6")
    e("v_lshl_add_u32 v6, v2, 4, v6")
    e("s_lshl_b32 s64, s52, 8")
    e(f"s_add_u32 s64, s64, {K3_CL}")
    e("v_add_u32 v6, s64, v6")
    e("v_bfe_u32 v7, v1, 2, 2")
    e("v_lshl_add_u32 v4, v2, 3, v7")
    e("v_lshlrev_b32 v4, 5, v4")
    e("v_and_b32 v8, 3, v1")
    e("v_lshl_add_u32 v4, v8, 3, v4")
    e("s_lshl_b32 s64, s52, 12")
    e("v_add_u32 v4, s64, v4")
    e("s_waitcnt lgkmcnt(0)")
    e("s_barrier")
    a.stamp()
    e("s_cmp_ge_u32 s52, 4")
    e("s_cbranch_scc1 K3_DOWN")
    e("s_setprio 3")
    for s in range(4):
        e(f"ds_read_b128 v[{64+4*s}:{67+4*s}], v6 offset:{64*s}")
        e(f"ds_read_b64_tr_b16 v[{80+4*s}:{81+4*s}], v4 offset:{K3_UV + 1024*s}")
        e(f"ds_read_b64_tr_b16 v[{82+4*s}:{83+4*s}], v4 offset:{K3_UV + 1024*s+128}")
    e("v_lshl_add_u32 v9, v2, 2, v7")
    e("v_and_b32 v5, 7, v9")
    e("v_lshlrev_b32 v9, 10, v9")
    e("v_lshl_add_u32 v9, v8, 3, v9")
    e("s_lshl_b32 s64, s52, 8")
    e(f"s_add_u32 s64, s64, {K3_WO}")
    e("v_add_u32 v9, s64, v9")
    for s in range(4):
        e(f"s_waitcnt lgkmcnt({9 - 3*s})")
        c = "v[32:35]" if s else "0"
        e(f"v_mfma_f32_16x16x32_bf16 v[32:35], v[{80+4*s}:{83+4*s}], v[{64+4*s}:{67+4*s}], {c}")
    e("v_lshlrev_b32 v4, 6, v3")
    e("v_lshl_add_u32 v4, v2, 4, v4")
    e("s_lshl_b32 s64, s52, 8")
    e(f"s_add_u32 s64, s64, {K3_CP}")
    e("v_add_u32 v4, s64, v4")
    e("v_and_b32 v6, 3, v3")
    e("v_lshlrev_b32 v6, 6, v6")
    e("v_lshl_add_u32 v6, v2, 4, v6")
    e(f"v_add_u32 v6, {K3_CP}, v6")
    e("s_mov_b64 exec, s[72:73]")
    e("ds_write_b128 v4, v[32:35]")
    e("s_mov_b64 exec, -1")
    e("s_waitcnt vmcnt(0) lgkmcnt(0)")
    e("s_barrier")
    for t in range(8):
        e(f"v_xor_b32 v10, {t}, v5")
        e("v_lshl_add_u32 v10, v10, 5, v9")
        e(f"ds_read_b64_tr_b16 v[{96+2*t}:{97+2*t}], v10")
    for w in range(4):
        e(f"ds_read_b128 v[{64+4*w}:{67+4*w}], v6 offset:{256*w}")
    e("s_lshl_b32 s64, s2, 13")
    e("s_lshl_b32 s65, s52, 11")
    e("s_add_u32 s64, s64, s65")
    e(f"s_add_u32 s64, s64, {WS_SP}")
    e("s_waitcnt lgkmcnt(0)")
    for c in range(4):
        e(f"v_add_f32 v{64+c}, v{64+c}, v{68+c}")
        e(f"v_add_f32 v{72+c}, v{72+c}, v{76+c}")
        e(f"v_add_f32 v{64+c}, v{64+c}, v{72+c}")
    e("v_cvt_pk_bf16_f32 v42, v64, v65")
    e("v_cvt_pk_bf16_f32 v43, v66, v67")
    e("s_nop 1")
    for t in range(8):
        e(f"v_mfma_f32_16x16x16_bf16 v[{64+4*t}:{67+4*t}], v[{96+2*t}:{97+2*t}], v[42:43], 0")
    e("s_nop 7")
    pack4(a, 64)
    pack4(a, 80)
    e("buffer_store_dwordx4 v[64:67], v11, s[48:51], s64 offen")
    e("buffer_store_dwordx4 v[80:83], v11, s[48:51], s64 offen offset:1024")
    e("s_branch K3_FIN")
    a.lab("K3_DOWN")
    e("s_cmp_lt_u32 s52, 12")
    e("s_cbranch_scc1 K3_DOWN2")
    e("s_waitcnt vmcnt(0)")
    e("s_barrier")
    e("s_branch K3_FIN")
    a.lab("K3_DOWN2")
    e("v_lshl_add_u32 v9, v2, 2, v7")
    e("v_min_u32 v9, 6, v9")
    e("v_lshlrev_b32 v5, 10, v9")
    e("v_lshl_add_u32 v5, v8, 3, v5")
    e(f"v_add_u32 v5, {K3_WD}, v5")
    e("s_sub_u32 s65, s52, 4")
    e("s_lshl_b32 s65, s65, 2")
    e("s_barrier")
    for t in range(4):
        e(f"s_add_u32 s66, s65, {t}")
        e("v_xor_b32 v6, s66, v9")
        e("v_lshl_add_u32 v6, v6, 5, v5")
        e(f"ds_read_b64_tr_b16 v[{96+2*t}:{97+2*t}], v6")
    e("v_mov_b32 v42, v22")
    e("v_mov_b32 v43, v23")
    e("s_waitcnt lgkmcnt(0)")
    e("s_add_u32 s66, s2, 256")
    e("s_lshl_b32 s66, s66, 13")
    for t in range(4):
        e(f"v_mfma_f32_16x16x16_bf16 v[{72+4*t}:{75+4*t}], v[{96+2*t}:{97+2*t}], v[42:43], 0")
    e("s_lshl_b32 s65, s65, 8")
    e("s_add_u32 s66, s66, s65")
    e(f"s_add_u32 s66, s66, {WS_SP}")
    e("s_nop 7")
    pack4(a, 72)
    e("buffer_store_dwordx4 v[72:75], v11, s[48:51], s66 offen")
    a.lab("K3_FIN")
    a.stamp()
    a.stamp_out(2)
    a.lab("K3_END")
    e("s_endpgm")

K4_LDS = 2048

def gen_k4(a):
    head(a, 'k4_kernel')
    e = a.e
    e("s_cmp_ge_u32 s2, 64")
    e("s_cbranch_scc1 K4_END")
    a.stamp()
    e("s_load_dwordx2 s[4:5], s[0:1], 0")
    e("s_load_dwordx2 s[8:9], s[0:1], 88")
    e("s_load_dwordx2 s[20:21], s[0:1], 104")
    e("v_and_b32 v1, 63, v0")
    e("v_lshrrev_b32 v4, 6, v0")
    e("v_lshrrev_b32 v2, 3, v0")
    e("v_readfirstlane_b32 s52, v4")
    e("s_lshr_b32 s53, s2, 3")
    e("s_and_b32 s54, s2, 7")
    e("v_and_b32 v3, 7, v0")
    e("v_lshlrev_b32 v4, 13, v2")
    e("v_lshl_add_u32 v4, v3, 4, v4")
    e("s_lshl_b32 s60, s2, 7")
    e(f"s_add_u32 s60, s60, {WS_SP}")
    e("v_bfe_u32 v8, v1, 2, 2")
    e("v_bfe_u32 v5, v1, 4, 1")
    e("v_lshlrev_b32 v5, 4, v5")
    e("v_and_b32 v6, 3, v1")
    e("v_add_u32 v5, v5, v6")
    e("s_lshl_b32 s61, s53, 6")
    e("s_and_b32 s62, s54, 1")
    e("s_lshl_b32 s62, s62, 5")
    e("s_add_u32 s61, s61, s62")
    e("s_lshr_b32 s62, s54, 1")
    e("s_lshl_b32 s62, s62, 2")
    e("s_add_u32 s61, s61, s62")
    e("v_add_u32 v5, s61, v5")
    e("v_lshlrev_b32 v5, 1, v5")
    e("v_lshl_add_u32 v5, v8, 10, v5")
    e("v_lshlrev_b32 v6, 2, v8")
    e("s_waitcnt lgkmcnt(0)")
    a.srd(24, 4, 4096)
    a.srd(28, 8, 4096)
    a.srd(48, 20, WS_END)
    for i in range(8):
        e(f"s_add_u32 s61, s60, {i*64*8192}")
        e(f"buffer_load_dwordx4 v[{16+4*i}:{19+4*i}], v4, s[48:51], s61 offen")
    e("buffer_load_ushort v50, v5, s[24:27], 0 offen")
    e(f"s_mov_b32 s62, {WS_XN}")
    e("buffer_load_ushort v51, v5, s[48:51], s62 offen")
    e(f"s_mov_b32 s62, {WS_RS}")
    e("buffer_load_dword v52, v6, s[48:51], s62 offen")
    a.stamp()
    e("s_waitcnt vmcnt(3)")
    a.stamp()
    for c in range(4):
        e(f"v_add_f32 v{16+c}, v{16+c}, v{20+c}")
        e(f"v_add_f32 v{24+c}, v{24+c}, v{28+c}")
        e(f"v_add_f32 v{16+c}, v{16+c}, v{24+c}")
        e(f"v_add_f32 v{32+c}, v{32+c}, v{36+c}")
        e(f"v_add_f32 v{40+c}, v{40+c}, v{44+c}")
        e(f"v_add_f32 v{20+c}, v{32+c}, v{40+c}")
    e("s_nop 1")
    for c in range(8):
        e(f"v_add_f32_dpp v{16+c}, v{16+c}, v{16+c} row_shr:8 row_mask:0xf bank_mask:0xf bound_ctrl:0")
    for c in range(8):
        e(f"v_mov_b32 v{24+c}, v{16+c}")
    e("s_nop 1")
    for c in range(8):
        e(f"v_permlane32_swap_b32 v{16+c}, v{24+c}")
    e("s_nop 1")
    for c in range(8):
        e(f"v_add_f32 v{16+c}, v{16+c}, v{24+c}")
    for c in range(8):
        e(f"v_mov_b32 v{24+c}, v{16+c}")
    e("s_nop 1")
    for c in range(8):
        e(f"v_permlane16_swap_b32 v{16+c}, v{24+c}")
    e("s_nop 1")
    for c in range(8):
        e(f"v_add_f32 v{16+c}, v{16+c}, v{24+c}")
    e("s_lshl_b32 s62, s52, 8")
    e("v_lshl_add_u32 v6, v3, 4, s62")
    e("v_and_b32 v7, 56, v1")
    e("v_cmp_eq_u32 vcc, 8, v7")
    e("s_and_saveexec_b64 s[72:73], vcc")
    e("ds_write_b128 v6, v[16:19]")
    e("ds_write_b128 v6, v[20:23] offset:128")
    e("s_mov_b64 exec, s[72:73]")
    e("s_waitcnt lgkmcnt(0)")
    e("s_barrier")
    e("s_cmp_lg_u32 s52, 0")
    e("s_cbranch_scc1 K4_FIN")
    e("v_and_b32 v6, 31, v1")
    e("v_lshlrev_b32 v6, 2, v6")
    for w in range(8):
        e(f"ds_read_b32 v{16+w}, v6 offset:{256*w}")
        e(f"ds_read_b32 v{24+w}, v6 offset:{256*w+128}")
    e("s_waitcnt vmcnt(0) lgkmcnt(0)")
    for w in range(1, 8):
        e(f"v_add_f32 v16, v16, v{16+w}")
        e(f"v_add_f32 v24, v24, v{24+w}")
    a.rne(16, 16)
    a.rne(20, 24)
    e("v_mul_f32 v20, v20, v52")
    a.rne(20, 20)
    e("v_lshlrev_b32 v51, 16, v51")
    e("v_lshlrev_b32 v50, 16, v50")
    e("v_add_f32 v20, v51, v20")
    a.rne(20, 20)
    e(f"v_mul_f32 v21, {hex(NLOG2E)}, v20")
    e("v_exp_f32 v21, v21")
    e("s_nop 0")
    e("v_add_f32 v21, 1.0, v21")
    e("v_rcp_f32 v21, v21")
    e("s_nop 0")
    e("v_mul_f32 v20, v20, v21")
    a.rne(20, 20)
    e("v_mul_f32 v16, v16, v20")
    a.rne(16, 16)
    e("v_add_f32 v16, v50, v16")
    e("v_cvt_pk_bf16_f32 v16, v16, v16")
    e("v_cmp_gt_u32 vcc, 32, v1")
    e("s_and_saveexec_b64 s[72:73], vcc")
    e("buffer_store_short v16, v5, s[28:31], 0 offen")
    a.lab("K4_FIN")
    a.stamp()
    a.stamp_out(3)
    a.lab("K4_END")
    e("s_endpgm")


def build():
    hdr = open(REF).read().split('; Override')[0]
    s = hdr
    s += f"; @launch kernel=k1_kernel grid=(256,1,1) block=(1024,1,1) lds={K1_LDS}\n"
    s += f"; @launch kernel=k2_kernel grid=(256,1,1) block=(1024,1,1) lds={K2_LDS}\n"
    s += f"; @launch kernel=k3_kernel grid=(256,1,1) block=(1024,1,1) lds={K3_LDS}\n"
    s += f"; @launch kernel=k4_kernel grid=(64,1,1) block=(512,1,1) lds={K4_LDS}\n"
    s += '.amdgcn_target "amdgcn-amd-amdhsa--gfx950"\n.text\n'
    a = A()
    gen_k1(a); gen_k2(a); gen_k3(a); gen_k4(a)
    s += a.text()
    s += '.section .rodata,"a"\n'
    s += kd('k1_kernel', 128) + kd('k2_kernel', 128) + kd('k3_kernel', 128) + kd('k4_kernel', 64)
    return s

if __name__ == '__main__':
    out = sys.argv[1]
    if 'stamp' in FL:
        STAMP = True
    open(out, 'w').write(build())
```

```python
import sys

REF = 'recurrent_scan__compressed_kv_cla__moe_arch_mod__decode.s.ref'

WS_QA = 0x000000
WS_HH = 0x020000
WS_XN = 0x024000
WS_RS = 0x025000
WS_ML = 0x026000
WS_PART = 0x030000
WS_SP = 0x430000
WS_END = WS_SP + 512 * 8192
WS_GUP = WS_END
WS_UVT = WS_GUP + 16*4*3584*4
WS_HH2 = WS_UVT + 0x400000
WS_END2 = WS_HH2 + 32768

LOG2E = 0x3fb8aa3b
SCALE = 0x3db504f3
EPS = 0x3727c5ac


STAMP = False

class A:
    def __init__(self):
        self.l = []

    def e(self, s):
        for line in s.strip().split('\n'):
            line = line.strip()
            if line:
                self.l.append('    ' + line)

    def lab(self, s):
        self.l.append(s + ':')

    def srd(self, d, base, nbytes):
        self.e(f"s_mov_b32 s{d}, s{base}")
        self.e(f"s_and_b32 s{d+1}, s{base+1}, 0xffff")
        self.e(f"s_mov_b32 s{d+2}, {hex(nbytes)}")
        self.e(f"s_mov_b32 s{d+3}, 0x00020000")

    def wave_sum(self, v):
        for n in (1, 2, 4, 8):
            self.e("s_nop 1")
            self.e(f"v_add_f32_dpp v{v}, v{v}, v{v} row_shr:{n} row_mask:0xf bank_mask:0xf bound_ctrl:0")
        self.e("s_nop 1")
        self.e(f"v_add_f32_dpp v{v}, v{v}, v{v} row_bcast:15 row_mask:0xa bank_mask:0xf")
        self.e("s_nop 1")
        self.e(f"v_add_f32_dpp v{v}, v{v}, v{v} row_bcast:31 row_mask:0xc bank_mask:0xf")

    def rne(self, d, s):
        self.e(f"v_cvt_pk_bf16_f32 v{d}, v{s}, v{s}")
        self.e(f"v_and_b32 v{d}, 0xffff0000, v{d}")

    nst = 0
    def stamp(self):
        if not STAMP: return
        self.e(f"s_memtime s[{76+2*self.nst}:{77+2*self.nst}]")
        self.nst += 1

    def stamp_out(self, kidx):
        if not STAMP: return
        n = self.nst; self.nst = 0
        self.e("s_mov_b64 exec, -1")
        self.e("s_waitcnt lgkmcnt(0)")
        self.e(f"s_add_u32 s74, s2, {kidx*512}")
        self.e("s_lshl_b32 s74, s74, 4")
        self.e("s_add_u32 s74, s74, s52")
        self.e("s_lshl_b32 s74, s74, 7")
        self.e("s_add_u32 s74, s74, 0x2000000")
        self.e("s_mov_b32 s50, 0x10000000")
        self.e("v_mov_b32 v1, 0")
        for i in range(n):
            self.e(f"v_mov_b32 v2, s{76+2*i}")
            self.e(f"buffer_store_dword v2, v1, s[48:51], s74 offen offset:{4*i}")

    def text(self):
        return '\n'.join(self.l) + '\n'


def kd(name, vgpr, sgpr=96):
    acc = (vgpr + 3) // 4 * 4
    return f""".p2align 6
.amdhsa_kernel {name}
  .amdhsa_next_free_vgpr {vgpr}
  .amdhsa_next_free_sgpr {sgpr}
  .amdhsa_accum_offset {acc}
  .amdhsa_group_segment_fixed_size 0
  .amdhsa_kernarg_size 112
  .amdhsa_user_sgpr_count 2
  .amdhsa_user_sgpr_kernarg_segment_ptr 1
  .amdhsa_system_sgpr_workgroup_id_x 1
.end_amdhsa_kernel
"""


def head(a, name):
    a.l.append(f".globl {name}\n.p2align 8\n.type {name},@function\n{name}:")


NLOG2E = LOG2E ^ 0x80000000
FL = set(sys.argv[2:])
PFN = 8

def pack4(a, base):
    for k in range(1, 4):
        for r in range(4):
            a.e(f"v_mov_b32_dpp v{base+r}, v{base+4*k+r} row_shr:{4*k} row_mask:0xf bank_mask:{hex(1<<k)}")

def lanes(e):
    e("v_and_b32 v1, 63, v0")
    e("v_lshrrev_b32 v4, 6, v0")
    e("v_lshrrev_b32 v2, 4, v1")
    e("v_and_b32 v3, 15, v1")
    e("v_readfirstlane_b32 s52, v4")
    e("v_lshlrev_b32 v11, 4, v1")

def xreduce_rows(a, v, t, op):
    e = a.e
    e(f"v_mov_b32 v{t}, v{v}")
    e("s_nop 1")
    e(f"v_permlane32_swap_b32 v{v}, v{t}")
    e("s_nop 1")
    e(f"{op} v{v}, v{v}, v{t}")
    e(f"v_mov_b32 v{t}, v{v}")
    e("s_nop 1")
    e(f"v_permlane16_swap_b32 v{v}, v{t}")
    e("s_nop 1")
    e(f"{op} v{v}, v{v}, v{t}")

K1_GU = 131072
K1_XN = 147456
K1_QP = K1_XN + 4352
K1_FLG = K1_QP + 4608
K1_LDS = K1_FLG + 64

def gen_k1(a):
    head(a, 'k1_kernel')
    e = a.e
    e("s_cmp_ge_u32 s2, 256")
    e("s_cbranch_scc1 K1_END")
    a.stamp()
    e("s_load_dwordx2 s[4:5], s[0:1], 0")
    e("s_load_dwordx4 s[8:11], s[0:1], 16")
    e("s_load_dwordx2 s[12:13], s[0:1], 56")
    e("s_load_dwordx4 s[16:19], s[0:1], 64")
    e("s_load_dwordx2 s[20:21], s[0:1], 104")
    e("s_load_dwordx2 s[22:23], s[0:1], 32")
    e("s_load_dwordx2 s[6:7], s[0:1], 8")
    lanes(e)
    e("s_and_b32 s57, s2, 7")
    e("s_lshr_b32 s58, s2, 3")
    e("s_and_b32 s59, s58, 3")
    e("s_lshl_b32 s53, s57, 2")
    e("s_add_u32 s53, s53, s59")
    e("s_lshr_b32 s54, s2, 5")
    e("s_mov_b32 s56, 1")
    e("s_mov_b32 s59, s2")
    e("s_cmp_lt_u32 s2, 224")
    e("s_cbranch_scc1 K1_LGOK")
    e("s_mov_b32 s56, 0")
    e("s_sub_u32 s59, s2, 224")
    a.lab("K1_LGOK")
    e("s_mul_i32 s60, s59, 2341")
    e("s_lshr_b32 s55, s60, 16")
    e("s_mul_i32 s60, s55, 28")
    e("s_sub_u32 s66, s59, s60")
    e("v_lshrrev_b32 v5, 1, v3")
    e("v_sub_u32 v6, v5, v2")
    e("v_and_b32 v7, 7, v6")
    e("v_subrev_u32 v6, 4, v6")
    e("v_and_b32 v8, 7, v6")
    e("v_and_b32 v9, 1, v3")
    e("v_lshlrev_b32 v10, 13, v2")
    e("v_lshl_or_b32 v7, v7, 1, v9")
    e("v_lshl_or_b32 v8, v8, 1, v9")
    e("v_lshl_add_u32 v7, v7, 4, v10")
    e("v_lshl_add_u32 v8, v8, 4, v10")
    e("v_lshrrev_b32 v12, 3, v1")
    e("v_mul_u32_u24 v12, 3584, v12")
    e("v_and_b32 v15, 7, v1")
    e("v_lshl_add_u32 v12, v15, 4, v12")
    e("v_lshl_add_u32 v13, v3, 4, v10")
    e("s_lshl_b32 s68, s54, 1")
    e("s_add_u32 s68, s68, s52")
    e("s_and_b32 s68, s68, 15")
    e("s_lshl_b32 s62, s53, 8")
    e("s_lshl_b32 s61, s68, 18")
    e("s_add_u32 s61, s61, s62")
    e("s_lshl_b32 s63, s68, 13")
    e("s_waitcnt lgkmcnt(0)")
    a.srd(24, 4, 4096)
    a.srd(28, 8, 0x400000)
    a.srd(36, 12, 1024)
    e("s_cmp_ge_u32 s52, 4")
    e("s_cbranch_scc1 K1_NOX")
    e("s_lshl_b32 s60, s52, 10")
    e("buffer_load_dwordx4 v[16:19], v11, s[24:27], s60 offen")
    e("buffer_load_dwordx4 v[20:23], v11, s[36:39], 0 offen")
    a.lab("K1_NOX")
    for t in range(8):
        e(f"s_add_u32 m0, s63, {t*1024}")
        e(f"s_add_u32 s64, s61, {t*32768}")
        e(f"buffer_load_dwordx4 v{7 + ((t >> 1) & 1)}, s[28:31], s64 offen nt lds")
    a.srd(32, 10, 0x400000)
    a.srd(40, 16, 512 * 3584)
    a.srd(44, 18, 512 * 3584)
    a.srd(48, 20, WS_END2)
    a.srd(92, 22, 0x400000)
    e("s_cmp_lt_u32 s52, 12")
    e("s_cbranch_scc1 K1_NOLATE")
    e("s_sub_u32 s70, s52, 12")
    e("s_lshl_b32 s61, s54, 6")
    e("s_lshl_b32 s64, s70, 4")
    e("s_add_u32 s61, s61, s64")
    e("s_lshl_b32 s65, s61, 5")
    e("s_lshl_b32 s61, s61, 13")
    e("s_add_u32 s71, s61, s62")
    for u in range(4):
        e(f"s_add_u32 s64, s71, {u*4*8192}")
        e(f"buffer_load_dwordx4 v[{24+4*u}:{27+4*u}], v13, s[32:35], s64 offen nt")
    a.lab("K1_NOLATE")
    e("s_cmp_lt_u32 s52, 8")
    e("s_cbranch_scc1 K1_NOUV")
    e("s_cmp_ge_u32 s52, 12")
    e("s_cbranch_scc1 K1_NOUV")
    e("s_sub_u32 s70, s52, 8")
    e("s_lshl_b32 s61, s54, 6")
    e("s_lshl_b32 s64, s70, 4")
    e("s_add_u32 s61, s61, s64")
    e("s_lshl_b32 s65, s61, 5")
    e("s_lshl_b32 s61, s61, 13")
    e("s_add_u32 s71, s61, s62")
    e("s_lshl_b32 s60, s53, 17")
    e("s_add_u32 s60, s60, s65")
    e(f"s_add_u32 s70, s60, {WS_UVT}")
    a.lab("K1_NOUV")
    e("s_cmp_ge_u32 s52, 4")
    e("s_cbranch_scc1 K1_LNDONE")
    a.stamp()
    e("s_waitcnt vmcnt(8)")
    for i in range(4):
        e(f"v_lshlrev_b32 v{40+2*i}, 16, v{16+i}")
        e(f"v_and_b32 v{41+2*i}, 0xffff0000, v{16+i}")
    e("v_add_f32 v48, v40, v41")
    e("v_add_f32 v49, v42, v43")
    e("v_add_f32 v50, v44, v45")
    e("v_add_f32 v51, v46, v47")
    e("v_add_f32 v48, v48, v49")
    e("v_add_f32 v50, v50, v51")
    e("v_add_f32 v48, v48, v50")
    a.wave_sum(48)
    e("s_nop 1")
    e("v_readlane_b32 s70, v48, 63")
    e("v_mov_b32 v49, 0x3b000000")
    e("s_nop 1")
    e("v_mul_f32 v49, s70, v49")
    e("v_mov_b32 v50, 0")
    for i in range(8):
        e(f"v_sub_f32 v51, v{40+i}, v49")
        e("v_fmac_f32 v50, v51, v51")
    a.wave_sum(50)
    e("s_nop 1")
    e("v_readlane_b32 s71, v50, 63")
    e("v_mov_b32 v50, 0x3b000000")
    e("s_nop 1")
    e("v_mul_f32 v50, s71, v50")
    a.rne(49, 49)
    a.rne(50, 50)
    e(f"v_add_f32 v50, {hex(EPS)}, v50")
    a.rne(50, 50)
    e("v_sqrt_f32 v50, v50")
    e("s_nop 0")
    a.rne(50, 50)
    e("v_rcp_f32 v51, v50")
    e("s_nop 0")
    for i in range(8):
        r = 40 + i
        e(f"v_sub_f32 v{r}, v{r}, v49")
        a.rne(r, r)
        e(f"v_mul_f32 v52, v{r}, v51")
        e(f"v_fma_f32 v53, -v52, v50, v{r}")
        e(f"v_fma_f32 v{r}, v53, v51, v52")
    for i in range(4):
        e(f"v_cvt_pk_bf16_f32 v{52+i}, v{40+2*i}, v{41+2*i}")
    e("s_mul_i32 s60, s52, 1088")
    e(f"s_add_u32 s60, s60, {K1_XN}")
    e("v_add_u32 v56, s60, v11")
    e("ds_write_b128 v56, v[52:55]")
    e(f"v_mov_b32 v56, {K1_FLG}")
    e("v_mov_b32 v57, 0")
    e("ds_write_b32 v56, v57")
    e("s_cmp_lg_u32 s2, 0")
    e("s_cbranch_scc1 K1_LNDONE")
    e("s_lshl_b32 s60, s52, 10")
    e(f"s_add_u32 s60, s60, {WS_XN}")
    e("buffer_store_dwordx4 v[52:55], v11, s[48:51], s60 offen")
    e("v_mov_b32 v57, 0")
    for i in range(4):
        e(f"v_lshlrev_b32 v58, 16, v{52+i}")
        e(f"v_lshlrev_b32 v59, 16, v{20+i}")
        e("v_fmac_f32 v57, v58, v59")
        e(f"v_and_b32 v58, 0xffff0000, v{52+i}")
        e(f"v_and_b32 v59, 0xffff0000, v{20+i}")
        e("v_fmac_f32 v57, v58, v59")
    a.wave_sum(57)
    a.rne(57, 57)
    e(f"v_mul_f32 v58, {hex(NLOG2E)}, v57")
    e("v_exp_f32 v58, v58")
    e("s_nop 0")
    e("v_add_f32 v58, 1.0, v58")
    e("v_rcp_f32 v58, v58")
    e("s_nop 0")
    a.rne(58, 58)
    e("s_lshl_b32 s60, s52, 2")
    e(f"s_add_u32 s60, s60, {WS_RS}")
    e("v_mov_b32 v59, 0")
    e("v_cmp_eq_u32 vcc, 63, v1")
    e("s_and_saveexec_b64 s[74:75], vcc")
    e("buffer_store_dword v58, v59, s[48:51], s60 offen")
    e("s_mov_b64 exec, -1")
    a.lab("K1_LNDONE")
    e("v_and_b32 v4, 3, v3")
    e("v_mul_u32_u24 v4, 1088, v4")
    e("v_lshl_add_u32 v4, v2, 4, v4")
    e("s_lshr_b32 s69, s52, 3")
    e("s_lshl_b32 s60, s69, 9")
    e(f"s_add_u32 s60, s60, {K1_XN}")
    e("v_add_u32 v57, s60, v4")
    e("v_bfe_u32 v5, v1, 2, 2")
    e("v_and_b32 v6, 3, v1")
    e("v_and_b32 v9, 1, v2")
    e("v_lshl_add_u32 v9, v9, 2, v5")
    e("v_lshl_add_u32 v10, v2, 3, v5")
    e("v_lshlrev_b32 v14, 8, v10")
    e("v_lshl_add_u32 v14, v6, 3, v14")
    e("s_and_b32 s60, s52, 7")
    e("v_add_u32 v12, s60, v9")
    e("v_and_b32 v12, 7, v12")
    e("v_lshl_add_u32 v64, v12, 5, v14")
    e("s_lshl_b32 s60, s69, 16")
    e("v_add_u32 v64, s60, v64")
    e("v_lshlrev_b32 v12, 7, v10")
    e("v_lshl_add_u32 v72, v6, 3, v12")
    e("s_and_b32 s60, s52, 7")
    e("s_lshr_b32 s61, s60, 2")
    e("s_lshl_b32 s61, s61, 13")
    e("s_and_b32 s60, s60, 3")
    e("s_lshl_b32 s60, s60, 5")
    e("s_add_u32 s60, s60, s61")
    e(f"s_add_u32 s60, s60, {K1_GU}")
    e("v_add_u32 v72, s60, v72")
    e("s_lshl_b32 s61, s55, 7")
    e(f"s_add_u32 s61, s61, {K1_XN}")
    e("v_add_u32 v73, s61, v4")
    e("s_mul_i32 s60, s55, 4*3584*4")
    e("s_and_b32 s61, s52, 7")
    e("s_lshr_b32 s64, s61, 2")
    e("s_mul_i32 s64, s64, 1792*4")
    e("s_add_u32 s60, s60, s64")
    e("s_and_b32 s61, s61, 3")
    e("s_lshl_b32 s61, s61, 6")
    e("s_add_u32 s60, s60, s61")
    e("s_lshl_b32 s61, s66, 8")
    e("s_add_u32 s60, s60, s61")
    e(f"s_add_u32 s67, s60, {WS_GUP}")
    e("v_mul_u32_u24 v74, 3584*4, v3")
    e("v_lshl_add_u32 v74, v2, 4, v74")
    e("v_lshlrev_b32 v75, 9, v3")
    e("v_lshl_add_u32 v75, v2, 4, v75")
    e("v_and_b32 v5, 1, v3")
    e("v_lshl_add_u32 v75, v5, 4, v75")
    e("v_bfe_u32 v5, v3, 1, 1")
    e("v_lshl_add_u32 v75, v5, 7, v75")
    e("s_mul_i32 s60, s69, 2304")
    e("s_and_b32 s61, s52, 7")
    e("s_lshl_b32 s61, s61, 6")
    e("s_add_u32 s60, s60, s61")
    e(f"s_add_u32 s60, s60, {K1_QP}")
    e("v_add_u32 v75, s60, v75")
    e("v_cmp_gt_u32 vcc, 4, v3")
    e("s_mov_b64 s[72:73], vcc")
    e("s_waitcnt lgkmcnt(0)")
    e("s_barrier")
    a.stamp()
    e("s_cmp_ge_u32 s52, 4")
    e("s_cbranch_scc1 K1_NOGU2")
    e("v_lshrrev_b32 v12, 3, v1")
    e("v_mul_u32_u24 v12, 3584, v12")
    e("v_and_b32 v15, 7, v1")
    e("v_lshl_add_u32 v12, v15, 4, v12")
    e("s_lshl_b32 s61, s55, 1")
    e("s_and_b32 s64, s52, 1")
    e("s_add_u32 s61, s61, s64")
    e("s_mul_i32 s61, s61, 32*3584")
    e("s_lshl_b32 s64, s66, 7")
    e("s_add_u32 s61, s61, s64")
    e("s_lshl_b32 s64, s52, 12")
    e("s_cmp_ge_u32 s52, 2")
    e("s_cbranch_scc1 K1_UPDMA")
    for u in range(4):
        e(f"s_add_u32 m0, s64, {K1_GU + u*1024}")
        e(f"s_add_u32 s65, s61, {u*8*3584}")
        e("buffer_load_dwordx4 v12, s[40:43], s65 offen nt lds")
    e("s_branch K1_NOGU2")
    a.lab("K1_UPDMA")
    for u in range(4):
        e(f"s_add_u32 m0, s64, {K1_GU + u*1024}")
        e(f"s_add_u32 s65, s61, {u*8*3584}")
        e("buffer_load_dwordx4 v12, s[44:47], s65 offen nt lds")
    a.lab("K1_NOGU2")
    def xf(s): return 40 + 4*s if s < 4 else 80 + 4*(s-4)
    for s in range(8):
        e(f"ds_read_b128 v[{xf(s)}:{xf(s)+3}], v57 offset:{64*s}")
    e("s_cmp_ge_u32 s52, 8")
    e("s_cbranch_scc1 K1_NOGX")
    e("ds_read_b128 v[16:19], v73")
    e("ds_read_b128 v[20:23], v73 offset:64")
    a.lab("K1_NOGX")
    e("s_sub_u32 s60, s52, 4")
    e("s_cmp_lt_u32 s60, 8")
    e("s_cbranch_scc1 K1_W0")
    e("s_waitcnt vmcnt(4)")
    e("s_branch K1_W1")
    a.lab("K1_W0")
    e("s_waitcnt vmcnt(0)")
    a.lab("K1_W1")
    e("s_waitcnt lgkmcnt(0)")
    e("s_barrier")
    a.stamp()
    e("s_cmp_lt_u32 s52, 8")
    e("s_cbranch_scc1 K1_NOUV2")
    e("s_cmp_ge_u32 s52, 12")
    e("s_cbranch_scc1 K1_NOUV2")
    for u in range(4):
        e(f"s_add_u32 s64, s71, {u*4*8192}")
        e(f"buffer_load_dwordx4 v[{24+4*u}:{27+4*u}], v13, s[92:95], s64 offen nt")
    a.lab("K1_NOUV2")
    if 'pf' in FL:
        e("s_sub_u32 s60, s52, 4")
        e("s_cmp_ge_u32 s60, 4")
        e("s_cbranch_scc1 K1_NOPF")
        a.srd(24, 6, 0x1000000)
        e("s_lshr_b32 s61, s58, 1")
        e("s_lshl_b32 s64, s57, 4")
        e("s_add_u32 s61, s61, s64")
        e("s_lshl_b32 s61, s61, 2")
        e("s_and_b32 s64, s58, 1")
        e("s_add_u32 s61, s61, s64")
        e("s_lshl_b32 s61, s61, 15")
        e("s_lshl_b32 s64, s60, 13")
        e("s_add_u32 s61, s61, s64")
        for u in range(PFN):
            e(f"s_add_u32 s64, s61, {u*1024}")
            e(f"buffer_load_dwordx4 v[24:27], v11, s[24:27], s64 offen")
        a.lab("K1_NOPF")
    for s in range(8):
        e(f"ds_read_b64_tr_b16 v[{96+4*s}:{97+4*s}], v64 offset:{s*8192}")
        e(f"ds_read_b64_tr_b16 v[{98+4*s}:{99+4*s}], v64 offset:{s*8192+1024}")
    for s in range(8):
        e(f"s_waitcnt lgkmcnt({14 - 2*s})")
        c = "v[76:79]" if s else "0"
        e(f"v_mfma_f32_16x16x32_bf16 v[76:79], v[{96+4*s}:{99+4*s}], v[{xf(s)}:{xf(s)+3}], {c}")
    e("s_cmp_lt_u32 s52, 12")
    e("s_cbranch_scc1 K1_W2")
    e("s_waitcnt vmcnt(0)")
    a.lab("K1_W2")
    e("s_mov_b64 exec, s[72:73]")
    e("s_nop 5")
    e("ds_write_b128 v75, v[76:79]")
    e("s_mov_b64 exec, -1")
    e("s_waitcnt lgkmcnt(0)")
    e("s_barrier")
    a.stamp()
    e("s_cmp_ge_u32 s52, 12")
    e("s_cbranch_scc1 K1_QA")
    e("s_cmp_ge_u32 s52, 8")
    e("s_cbranch_scc1 K1_UVST")
    e("s_cmp_eq_u32 s56, 0")
    e("s_cbranch_scc1 K1_FIN")
    e(f"v_mov_b32 v5, {K1_FLG}")
    e("s_cmp_ge_u32 s52, 4")
    e("s_cbranch_scc1 K1_GUPOLL")
    e("s_waitcnt vmcnt(0)")
    e("v_mov_b32 v6, 1")
    e("s_mov_b64 exec, 1")
    e("ds_add_u32 v5, v6")
    e("s_mov_b64 exec, -1")
    a.lab("K1_GUPOLL")
    e("ds_read_b32 v6, v5")
    e("s_waitcnt lgkmcnt(0)")
    e("v_readfirstlane_b32 s60, v6")
    e("s_cmp_ge_u32 s60, 4")
    e("s_cbranch_scc1 K1_GUGO")
    e("s_sleep 1")
    e("s_branch K1_GUPOLL")
    a.lab("K1_GUGO")
    e("ds_read_b64_tr_b16 v[96:97], v72")
    e("ds_read_b64_tr_b16 v[98:99], v72 offset:512")
    e("ds_read_b64_tr_b16 v[100:101], v72 offset:4096")
    e("ds_read_b64_tr_b16 v[102:103], v72 offset:4608")
    e("s_waitcnt lgkmcnt(2)")
    e("v_mfma_f32_16x16x32_bf16 v[76:79], v[96:99], v[16:19], 0")
    e("s_waitcnt lgkmcnt(0)")
    e("v_mfma_f32_16x16x32_bf16 v[76:79], v[100:103], v[20:23], v[76:79]")
    e("s_mov_b64 exec, s[72:73]")
    e("s_nop 7")
    e("buffer_store_dwordx4 v[76:79], v74, s[48:51], s67 offen")
    e("s_branch K1_FIN")
    a.lab("K1_UVST")
    e("v_lshrrev_b32 v15, 1, v3")
    e("v_lshlrev_b32 v15, 14, v15")
    e("v_lshl_add_u32 v15, v2, 5, v15")
    e("v_and_b32 v5, 1, v3")
    e("v_lshl_add_u32 v15, v5, 4, v15")
    e("s_waitcnt vmcnt(0)")
    for u in range(4):
        e(f"buffer_store_dwordx4 v[{24+4*u}:{27+4*u}], v15, s[48:51], s70 offen offset:{128*u}")
    e("s_branch K1_FIN")
    a.lab("K1_QA")
    e("s_setprio 3")
    e("s_sub_u32 s70, s52, 12")
    e("s_lshl_b32 s60, s70, 12")
    for u in range(4):
        e(f"v_add_u32 v5, {4*u}, v2")
        e("v_xor_b32 v6, v5, v3")
        e("v_lshlrev_b32 v5, 8, v5")
        e("v_lshl_add_u32 v5, v6, 4, v5")
        e("v_add_u32 v5, s60, v5")
        e(f"ds_write_b128 v5, v[{24+4*u}:{27+4*u}]")
    e("v_and_b32 v4, 3, v3")
    e("v_lshlrev_b32 v4, 9, v4")
    e("v_lshl_add_u32 v4, v2, 5, v4")
    e("v_and_b32 v5, 1, v3")
    e("v_lshl_add_u32 v4, v5, 4, v4")
    e("v_bfe_u32 v5, v3, 1, 1")
    e("v_lshl_add_u32 v4, v5, 7, v4")
    e(f"v_add_u32 v4, {K1_QP}, v4")
    for s in range(4):
        for k in range(2):
            e(f"ds_read_b128 v[{40+16*s+8*k}:{43+16*s+8*k}], v4 offset:{2304*k + 128*s}")
            e(f"ds_read_b128 v[{44+16*s+8*k}:{47+16*s+8*k}], v4 offset:{2304*k + 128*s + 16}")
    e("v_lshlrev_b32 v5, 8, v3")
    e("v_add_u32 v5, s60, v5")
    for s in range(4):
        e(f"v_add_u32 v6, {4*s}, v2")
        e("v_xor_b32 v6, v6, v3")
        e("v_lshl_add_u32 v6, v6, 4, v5")
        e(f"ds_read_b128 v[{24+4*s}:{27+4*s}], v6")
    e("s_lshr_b32 s60, s53, 4")
    e("s_lshl_b32 s60, s60, 4")
    e("s_lshl_b32 s61, s54, 1")
    e("s_add_u32 s60, s60, s61")
    e("s_lshr_b32 s61, s70, 1")
    e("s_add_u32 s60, s60, s61")
    e("s_lshl_b32 s60, s60, 10")
    e("s_and_b32 s61, s70, 1")
    e("s_lshl_b32 s61, s61, 9")
    e("s_add_u32 s60, s60, s61")
    e("s_and_b32 s61, s53, 15")
    e("s_lshl_b32 s61, s61, 4")
    e("s_add_u32 s60, s60, s61")
    e(f"s_add_u32 s60, s60, {WS_QA}")
    e("v_lshlrev_b32 v4, 15, v3")
    e("v_lshrrev_b32 v5, 1, v2")
    e("v_lshl_add_u32 v4, v5, 8, v4")
    e("v_and_b32 v5, 1, v2")
    e("v_lshl_add_u32 v4, v5, 3, v4")
    e("s_waitcnt lgkmcnt(4)")
    for s in range(4):
        for i in range(8):
            e(f"v_add_f32 v{40+16*s+i}, v{40+16*s+i}, v{48+16*s+i}")
        for i in range(4):
            e(f"v_cvt_pk_bf16_f32 v{104+4*s+i}, v{40+16*s+2*i}, v{41+16*s+2*i}")
    e("s_waitcnt lgkmcnt(0)")
    e("s_nop 0")
    for s in range(4):
        c = "v[120:123]" if s else "0"
        e(f"v_mfma_f32_16x16x32_bf16 v[120:123], v[{24+4*s}:{27+4*s}], v[{104+4*s}:{107+4*s}], {c}")
    e("s_nop 7")
    e("v_cvt_pk_bf16_f32 v124, v120, v121")
    e("v_cvt_pk_bf16_f32 v125, v122, v123")
    e("s_mov_b64 exec, s[72:73]")
    e("buffer_store_dwordx2 v[124:125], v4, s[48:51], s60 offen")
    a.lab("K1_FIN")
    a.stamp()
    a.stamp_out(0)
    a.lab("K1_END")
    e("s_endpgm")

K2_QAI = 131072
K2_PI = K2_QAI + 16384
K2_MX = K2_PI + 4096
K2_LS = K2_MX + 512
K2_OI = 0
K2_LDS = K2_LS + 512

def gen_k2(a):
    head(a, 'k2_kernel')
    e = a.e
    e("s_cmp_ge_u32 s2, 256")
    e("s_cbranch_scc1 K2_END")
    a.stamp()
    e("s_load_dwordx2 s[4:5], s[0:1], 8")
    e("s_load_dwordx2 s[20:21], s[0:1], 104")
    lanes(e)
    e("s_and_b32 s57, s2, 7")
    e("s_lshr_b32 s58, s2, 3")
    e("s_and_b32 s53, s58, 1")
    e("s_lshr_b32 s58, s58, 1")
    e("s_lshl_b32 s57, s57, 4")
    e("s_add_u32 s58, s58, s57")
    e("s_lshr_b32 s54, s58, 5")
    e("s_and_b32 s59, s52, 1")
    e("s_lshl_b32 s59, s59, 7")
    e("v_xor_b32 v12, s59, v11")
    for f in range(1, 4):
        e(f"v_xor_b32 v{12+f}, {f*32}, v12")
    e("s_lshl_b32 s60, s58, 17")
    e("s_lshl_b32 s61, s52, 13")
    e("s_add_u32 s60, s60, s61")
    e("s_lshl_b32 s63, s54, 1")
    e("s_add_u32 s63, s63, s53")
    e("s_lshl_b32 s63, s63, 14")
    e("s_lshl_b32 s64, s52, 10")
    e("s_add_u32 s63, s63, s64")
    e(f"s_add_u32 s63, s63, {WS_QA}")
    e("s_waitcnt lgkmcnt(0)")
    a.srd(24, 4, 0x1000000)
    a.srd(48, 20, WS_END2)
    e(f"s_add_u32 m0, s64, {K2_QAI}")
    e("s_nop 0")
    e("buffer_load_dwordx4 v11, s[48:51], s63 offen lds")
    for u in range(8):
        e(f"s_add_u32 m0, s61, {u*1024}")
        e(f"s_add_u32 s62, s60, {u*1024}")
        e(f"buffer_load_dwordx4 v{12 + (u & 3)}, s[24:27], s62 offen nt lds")
    e("s_cmp_lg_u32 s52, 15")
    e("s_cbranch_scc1 K2_NODN")
    e("v_and_b32 v4, 7, v1")
    e("v_min_u32 v4, 6, v4")
    e("v_bfe_u32 v5, v1, 3, 1")
    e("v_mul_u32_u24 v5, 1792, v5")
    e("v_add_u32 v4, v4, v5")
    e("v_mul_u32_u24 v5, 3584, v2")
    e("v_add_u32 v4, v4, v5")
    e("v_lshlrev_b32 v4, 2, v4")
    e("s_mul_i32 s65, s2, 28")
    e(f"s_add_u32 s65, s65, {WS_GUP}")
    for k in range(8):
        e(f"s_add_u32 s66, s65, {k*4*3584*4}")
        e(f"buffer_load_dword v{108+k}, v4, s[48:51], s66 offen")
    a.lab("K2_NODN")
    a.stamp()
    e("v_and_b32 v4, 8, v3")
    e("v_and_b32 v5, 3, v3")
    e("v_lshl_or_b32 v4, v5, 1, v4")
    e("v_and_b32 v5, 2, v4")
    e("v_xor_b32 v5, v5, v2")
    e("v_and_b32 v4, 12, v4")
    e("v_lshlrev_b32 v6, 10, v3")
    e("v_lshl_add_u32 v6, v5, 4, v6")
    e("s_lshl_b32 s61, s52, 14")
    e("v_add_u32 v6, s61, v6")
    for q in range(4):
        e(f"v_xor_b32 v7, {4*q}, v4")
        e(f"v_lshl_add_u32 v{20+q}, v7, 4, v6")
    e("v_bfe_u32 v4, v1, 2, 2")
    e("v_and_b32 v5, 3, v1")
    e("v_lshl_add_u32 v6, v2, 3, v4")
    e("v_lshlrev_b32 v6, 10, v6")
    e("v_and_b32 v8, 1, v5")
    e("v_lshl_add_u32 v6, v8, 3, v6")
    e("v_and_b32 v7, 1, v2")
    e("v_lshlrev_b32 v7, 3, v7")
    e("v_lshl_or_b32 v7, v4, 1, v7")
    e("v_lshrrev_b32 v8, 1, v5")
    e("s_lshl_b32 s62, s52, 2")
    e("v_add_u32 v8, s62, v8")
    for ct in range(2):
        e(f"v_add_u32 v9, {2*ct}, v8")
        e("v_xor_b32 v9, v9, v7")
        e(f"v_lshl_add_u32 v{24+ct}, v9, 4, v6")
        e(f"v_add_u32 v{26+ct}, 0x10000, v{24+ct}")
    e("v_lshlrev_b32 v38, 5, v3")
    e(f"s_mov_b32 s63, {hex(SCALE)}")
    e(f"s_mov_b32 s64, {hex(LOG2E)}")
    e("s_cmp_eq_u32 s52, 15")
    e("s_cbranch_scc1 K2_W15")
    e("s_waitcnt vmcnt(8)")
    e("s_barrier")
    e("s_cmp_ge_u32 s52, 8")
    e("s_cbranch_scc1 K2_NOPRE")
    e(f"v_add_u32 v4, {K2_QAI}, v11")
    for s in range(16):
        e(f"ds_read_b128 v[{64+4*s}:{67+4*s}], v4 offset:{1024*s}")
    a.lab("K2_NOPRE")
    e("s_waitcnt vmcnt(0)")
    e("s_branch K2_BARA")
    a.lab("K2_W15")
    e("s_waitcnt vmcnt(16)")
    e("s_barrier")
    e("s_waitcnt vmcnt(8)")
    a.lab("K2_BARA")
    e("s_barrier")
    a.stamp()
    e("s_cmp_ge_u32 s52, 8")
    e("s_cbranch_scc1 K2_NOQK")
    for s in range(6):
        e(f"ds_read_b128 v[{40+4*s}:{43+4*s}], v{20 + (s & 3)} offset:{256*(s >> 2)}")
    for s in range(16):
        outstanding_after = min(5, 15 - s)
        e(f"s_waitcnt lgkmcnt({outstanding_after})")
        c = "v[32:35]" if s else "0"
        r = 40 + 4 * (s % 6)
        e(f"v_mfma_f32_16x16x32_bf16 v[32:35], v[{r}:{r+3}], v[{64+4*s}:{67+4*s}], {c}")
        if s + 6 < 16:
            s2 = s + 6
            e("s_nop 0")
            e(f"ds_read_b128 v[{r}:{r+3}], v{20 + (s2 & 3)} offset:{256*(s2 >> 2)}")
    e("s_nop 7")
    for r in range(4):
        a.rne(32 + r, 32 + r)
        e(f"v_mul_f32 v{32+r}, s63, v{32+r}")
        a.rne(32 + r, 32 + r)
    e("v_max_f32 v36, v32, v33")
    e("v_max3_f32 v36, v36, v34, v35")
    xreduce_rows(a, 36, 37, "v_max_f32")
    e("s_lshl_b32 s62, s52, 2")
    e(f"s_add_u32 s62, s62, {K2_MX}")
    e("v_add_u32 v39, s62, v38")
    e("ds_write_b32 v39, v36")
    e("s_waitcnt lgkmcnt(0)")
    e("s_barrier")
    e(f"v_add_u32 v39, {K2_MX}, v38")
    e("ds_read_b128 v[40:43], v39")
    e("ds_read_b128 v[44:47], v39 offset:16")
    e("s_waitcnt lgkmcnt(0)")
    e("v_max3_f32 v40, v40, v41, v42")
    e("v_max3_f32 v44, v44, v45, v46")
    e("v_max3_f32 v40, v40, v43, v47")
    e("v_max_f32 v40, v40, v44")
    for r in range(4):
        e(f"v_sub_f32 v{32+r}, v{32+r}, v40")
        e(f"v_mul_f32 v{32+r}, s64, v{32+r}")
        e(f"v_exp_f32 v{32+r}, v{32+r}")
    e("s_nop 0")
    e("v_add_f32 v36, v32, v33")
    e("v_add_f32 v37, v34, v35")
    e("v_add_f32 v36, v36, v37")
    e("v_cvt_pk_bf16_f32 v42, v32, v33")
    e("v_cvt_pk_bf16_f32 v43, v34, v35")
    e("s_lshl_b32 s62, s52, 9")
    e(f"s_add_u32 s62, s62, {K2_PI}")
    e("v_lshrrev_b32 v44, 1, v2")
    e("v_lshlrev_b32 v44, 8, v44")
    e("v_lshl_add_u32 v44, v3, 4, v44")
    e("v_and_b32 v45, 1, v2")
    e("v_lshl_add_u32 v44, v45, 3, v44")
    e("v_add_u32 v44, s62, v44")
    e("ds_write_b64 v44, v[42:43]")
    xreduce_rows(a, 36, 37, "v_add_f32")
    e("s_lshl_b32 s62, s52, 2")
    e(f"s_add_u32 s62, s62, {K2_LS}")
    e("v_add_u32 v39, s62, v38")
    e("ds_write_b32 v39, v36")
    e("s_branch K2_PV0")
    a.lab("K2_NOQK")
    e("s_cmp_lg_u32 s52, 15")
    e("s_cbranch_scc1 K2_NOHH")
    e("s_waitcnt vmcnt(0)")
    for k in range(1, 8):
        e(f"v_add_f32 v108, v108, v{108+k}")
    a.rne(108, 108)
    e("v_mov_b32 v109, v108")
    e("s_nop 1")
    e("v_mov_b32_dpp v109, v108 row_shl:8 row_mask:0xf bank_mask:0xf")
    e(f"v_mul_f32 v110, {hex(NLOG2E)}, v108")
    e("v_exp_f32 v110, v110")
    e("s_nop 0")
    e("v_add_f32 v110, 1.0, v110")
    e("v_rcp_f32 v110, v110")
    e("s_nop 0")
    e("v_mul_f32 v108, v108, v110")
    a.rne(108, 108)
    e("v_mul_f32 v108, v108, v109")
    e("v_cvt_pk_bf16_f32 v108, v108, v108")
    e("v_cmp_gt_u32 vcc, 7, v3")
    e("s_nop 1")
    e("v_cndmask_b32 v108, 0, v108, vcc")
    e("v_lshlrev_b32 v109, 1, v1")
    e("s_lshl_b32 s65, s2, 7")
    e(f"s_add_u32 s65, s65, {WS_HH2}")
    e("buffer_store_short v108, v109, s[48:51], s65 offen")
    a.lab("K2_NOHH")
    e("s_barrier")
    a.lab("K2_PV0")
    for ks in range(4):
        for ct in range(2):
            base = (24 if ks < 2 else 26) + ct
            off = (ks & 1) * 32768
            r = 64 + 4 * (2 * ks + ct)
            e(f"ds_read_b64_tr_b16 v[{r}:{r+1}], v{base} offset:{off}")
            e(f"ds_read_b64_tr_b16 v[{r+2}:{r+3}], v{base} offset:{off+4096}")
    e("s_waitcnt lgkmcnt(0)")
    e("s_barrier")
    a.stamp()
    e(f"v_add_u32 v4, {K2_PI}, v11")
    for ks in range(4):
        e(f"ds_read_b128 v[{48+4*ks}:{51+4*ks}], v4 offset:{1024*ks}")
    for ks in range(4):
        e(f"s_waitcnt lgkmcnt({3-ks})")
        for ct in range(2):
            r = 64 + 4 * (2 * ks + ct)
            c = f"v[{96+4*ct}:{99+4*ct}]" if ks else "0"
            e(f"v_mfma_f32_16x16x32_bf16 v[{96+4*ct}:{99+4*ct}], v[{r}:{r+3}], v[{48+4*ks}:{51+4*ks}], {c}")
    e("v_mul_u32_u24 v4, 1040, v3")
    e("v_lshl_add_u32 v4, v2, 3, v4")
    e("s_lshl_b32 s61, s52, 6")
    e(f"s_add_u32 s61, s61, {K2_OI}")
    e("v_add_u32 v4, s61, v4")
    e("s_nop 2")
    for ct in range(2):
        e(f"v_cvt_pk_bf16_f32 v{104+2*ct}, v{96+4*ct}, v{97+4*ct}")
        e(f"v_cvt_pk_bf16_f32 v{105+2*ct}, v{98+4*ct}, v{99+4*ct}")
        e(f"ds_write_b64 v4, v[{104+2*ct}:{105+2*ct}] offset:{32*ct}")
    e("s_mul_i32 s61, s52, 1040")
    e(f"s_add_u32 s61, s61, {K2_OI}")
    e("v_add_u32 v4, s61, v11")
    e("s_lshl_b32 s60, s53, 4")
    e("s_add_u32 s60, s60, s52")
    e("s_lshl_b32 s60, s60, 17")
    e("s_lshl_b32 s61, s58, 10")
    e("s_add_u32 s60, s60, s61")
    e(f"s_add_u32 s60, s60, {WS_PART}")
    e("s_waitcnt lgkmcnt(0)")
    e("s_barrier")
    e("ds_read_b128 v[104:107], v4")
    e("s_waitcnt lgkmcnt(0)")
    e("buffer_store_dwordx4 v[104:107], v11, s[48:51], s60 offen " + ('nt' if 'stnt' in FL else '') + (' sc0 sc1' if 'stsc' in FL else ''))
    a.stamp()
    e("s_cmp_lg_u32 s52, 0")
    e("s_cbranch_scc1 K2_FIN")
    e(f"v_add_u32 v39, {K2_LS}, v38")
    e("ds_read_b128 v[88:91], v39")
    e("ds_read_b128 v[92:95], v39 offset:16")
    e("s_waitcnt lgkmcnt(0)")
    e("v_add_f32 v88, v88, v89")
    e("v_add_f32 v90, v90, v91")
    e("v_add_f32 v92, v92, v93")
    e("v_add_f32 v94, v94, v95")
    e("v_add_f32 v88, v88, v90")
    e("v_add_f32 v92, v92, v94")
    e("v_add_f32 v41, v88, v92")
    e("s_lshl_b32 s60, s53, 14")
    e("s_lshl_b32 s61, s58, 3")
    e("s_add_u32 s60, s60, s61")
    e(f"s_add_u32 s60, s60, {WS_ML}")
    e("v_lshlrev_b32 v4, 10, v3")
    e("v_cmp_gt_u32 vcc, 16, v1")
    e("s_and_saveexec_b64 s[72:73], vcc")
    e("buffer_store_dwordx2 v[40:41], v4, s[48:51], s60 offen")
    a.lab("K2_FIN")
    a.stamp()
    a.stamp_out(1)
    a.lab("K2_END")
    e("s_endpgm")


K3_UV = 0
K3_WO = 16384
K3_CL = 32768
K3_CP = K3_CL + 4352
K3_WD = K3_CP + 1024
K3_GS = K3_WD + 8192
K3_LDS = K3_GS + 4096

def gen_k3(a):
    head(a, 'k3_kernel')
    e = a.e
    e("s_cmp_ge_u32 s2, 256")
    e("s_cbranch_scc1 K3_END")
    a.stamp()
    e("s_load_dwordx2 s[10:11], s[0:1], 40")
    e("s_load_dwordx2 s[12:13], s[0:1], 80")
    e("s_load_dwordx2 s[20:21], s[0:1], 104")
    lanes(e)
    e("v_and_b32 v14, 3, v3")
    e("v_lshlrev_b32 v14, 5, v14")
    e("v_lshl_add_u32 v14, v2, 3, v14")
    e("v_cmp_gt_u32 vcc, 4, v3")
    e("s_mov_b64 s[72:73], vcc")
    e("s_and_b32 s57, s2, 7")
    e("s_lshr_b32 s58, s2, 3")
    e("s_and_b32 s59, s58, 3")
    e("s_lshl_b32 s53, s57, 2")
    e("s_add_u32 s53, s53, s59")
    e("s_lshr_b32 s54, s58, 2")
    e("s_lshl_b32 s69, s54, 1")
    e("s_add_u32 s69, s69, s52")
    e("s_and_b32 s69, s69, 15")
    e("s_lshr_b32 s55, s69, 2")
    e("s_lshl_b32 s60, s53, 2")
    e("s_add_u32 s60, s60, s55")
    e("v_lshlrev_b32 v12, 10, v2")
    e("v_lshl_add_u32 v12, v3, 4, v12")
    e("v_and_b32 v4, 31, v1")
    e("v_lshlrev_b32 v4, 3, v4")
    e("s_waitcnt lgkmcnt(0)")
    a.srd(48, 20, WS_END2)
    a.srd(28, 10, 0x400000)
    a.srd(32, 12, 1792 * 1024)
    e("s_cmp_ge_u32 s52, 4")
    e("s_cbranch_scc1 K3_NOUVT")
    e("s_lshl_b32 s70, s52, 12")
    e("s_lshl_b32 s61, s53, 3")
    e("s_add_u32 s61, s61, s54")
    e("s_lshl_b32 s61, s61, 14")
    e("s_add_u32 s61, s61, s70")
    e(f"s_add_u32 s61, s61, {WS_UVT}")
    for u in range(4):
        e(f"s_add_u32 m0, s70, {K3_UV + u*1024}")
        e(f"s_add_u32 s63, s61, {u*1024}")
        e("buffer_load_dwordx4 v11, s[48:51], s63 offen lds")
    a.lab("K3_NOUVT")
    e("s_lshl_b32 s61, s60, 8")
    e(f"s_add_u32 s61, s61, {WS_ML}")
    e("buffer_load_dwordx2 v[16:17], v4, s[48:51], s61 offen")
    e("s_lshl_b32 s65, s2, 7")
    e(f"s_add_u32 s65, s65, {WS_HH2}")
    e("buffer_load_dwordx2 v[22:23], v14, s[48:51], s65 offen")
    e("s_lshl_b32 s61, s60, 15")
    e("s_and_b32 s62, s69, 3")
    e("s_lshl_b32 s63, s62, 8")
    e("s_add_u32 s61, s61, s63")
    e(f"s_add_u32 s61, s61, {WS_PART}")
    for u in range(8):
        e(f"s_add_u32 s63, s61, {u*4096}")
        e(f"buffer_load_dwordx4 v[{64+4*u}:{67+4*u}], v12, s[48:51], s63 offen")
    e("s_cmp_lt_u32 s52, 12")
    e("s_cbranch_scc1 K3_NOCOLD")
    e("s_sub_u32 s71, s52, 12")
    e("s_lshl_b32 s70, s71, 12")
    e("s_lshl_b32 s61, s53, 7")
    e("s_lshl_b32 s63, s54, 4")
    e("s_add_u32 s61, s61, s63")
    e("s_lshl_b32 s63, s71, 2")
    e("s_add_u32 s61, s61, s63")
    e("s_lshl_b32 s61, s61, 10")
    e("s_and_b32 s63, s71, 1")
    e("s_lshl_b32 s63, s63, 7")
    for u in range(4):
        e(f"s_add_u32 s64, s63, {u*32}")
        e("v_xor_b32 v6, s64, v11")
        e(f"s_add_u32 m0, s70, {K3_WO + u*1024}")
        e(f"s_add_u32 s65, s61, {u*1024}")
        e("buffer_load_dwordx4 v6, s[28:31], s65 offen nt lds")
    e("s_mul_i32 s65, s2, 7168")
    for r in range(2):
        e("s_lshl_b32 s66, s71, 1")
        e(f"s_add_u32 s66, s66, {r}")
        e("s_min_u32 s66, s66, 6")
        e("s_lshl_b32 s67, s66, 5")
        e("v_xor_b32 v6, s67, v11")
        e("s_lshl_b32 s66, s66, 10")
        e(f"s_add_u32 m0, s66, {K3_WD}")
        e("s_add_u32 s66, s66, s65")
        e("buffer_load_dwordx4 v6, s[32:35], s66 offen nt lds")
    a.lab("K3_NOCOLD")
    a.stamp()
    e("v_lshlrev_b32 v13, 2, v2")
    for extra, lab in ((6, "K3_CA"), (0, "K3_CB")):
        if extra:
            e("s_cmp_lt_u32 s52, 12")
            e("s_cbranch_scc1 K3_CB")
        else:
            a.lab("K3_CB")
        e(f"s_waitcnt vmcnt({8+extra})")
        e("v_mov_b32 v18, v16")
        for n in (1, 2, 4, 8):
            e("s_nop 1")
            e(f"v_max_f32_dpp v18, v18, v18 row_shr:{n} row_mask:0xf bank_mask:0xf")
        e("s_nop 1")
        e("v_readlane_b32 s64, v18, 15")
        e("v_readlane_b32 s65, v18, 31")
        e("s_nop 1")
        e("v_mov_b32 v18, s64")
        e("v_max_f32 v18, s65, v18")
        e("v_sub_f32 v19, v16, v18")
        e(f"v_mul_f32 v19, {hex(LOG2E)}, v19")
        e("v_exp_f32 v19, v19")
        e("s_nop 0")
        e("v_mul_f32 v20, v19, v17")
        for n in (1, 2, 4, 8):
            e("s_nop 1")
            e(f"v_add_f32_dpp v20, v20, v20 row_shr:{n} row_mask:0xf bank_mask:0xf bound_ctrl:0")
        e("s_nop 1")
        e("v_readlane_b32 s64, v20, 15")
        e("v_readlane_b32 s65, v20, 31")
        e("s_nop 1")
        e("v_mov_b32 v20, s64")
        e("v_add_f32 v20, s65, v20")
        e("v_rcp_f32 v20, v20")
        e("s_nop 0")
        e("v_mul_f32 v19, v19, v20")
        for u in range(8):
            e(f"ds_bpermute_b32 v{96+2*u}, v13, v19 offset:{16*u}")
        for u in range(8):
            e(f"s_waitcnt vmcnt({7-u+extra}) lgkmcnt({7-u})")
            for i in range(4):
                t = 40 + 2 * (i & 1)
                e(f"v_lshlrev_b32 v{t}, 16, v{64+4*u+i}")
                e(f"v_and_b32 v{t+1}, 0xffff0000, v{64+4*u+i}")
                if u == 0:
                    e(f"v_pk_mul_f32 v[{24+2*i}:{25+2*i}], v[{t}:{t+1}], v[{96+2*u}:{97+2*u}] op_sel_hi:[1,0]")
                else:
                    e(f"v_pk_fma_f32 v[{24+2*i}:{25+2*i}], v[{t}:{t+1}], v[{96+2*u}:{97+2*u}], v[{24+2*i}:{25+2*i}] op_sel_hi:[1,0,1]")

        if extra:
            e("s_branch K3_CC")
    a.lab("K3_CC")
    a.stamp()
    for sw in ("v_permlane32_swap_b32", "v_permlane16_swap_b32"):
        for i in range(8):
            e(f"v_mov_b32 v{32+i}, v{24+i}")
        e("s_nop 0")
        for i in range(8):
            e(f"{sw} v{24+i}, v{32+i}")
        e("s_nop 0")
        for i in range(8):
            e(f"v_add_f32 v{24+i}, v{24+i}, v{32+i}")
    for i in range(4):
        e(f"v_cvt_pk_bf16_f32 v{32+i}, v{24+2*i}, v{25+2*i}")
    e("s_mul_i32 s64, s55, 1088")
    e("s_lshl_b32 s65, s62, 8")
    e("s_add_u32 s64, s64, s65")
    e(f"s_add_u32 s64, s64, {K3_CL}")
    e("v_lshl_add_u32 v4, v3, 4, s64")
    e("ds_write_b128 v4, v[32:35]")
    e("v_and_b32 v6, 3, v3")
    e("v_mul_u32_u24 v6, 1088, v6")
    e("v_lshl_add_u32 v6, v2, 4, v6")
    e("s_lshl_b32 s64, s52, 8")
    e(f"s_add_u32 s64, s64, {K3_CL}")
    e("v_add_u32 v6, s64, v6")
    e("v_bfe_u32 v7, v1, 2, 2")
    e("v_lshl_add_u32 v4, v2, 3, v7")
    e("v_lshlrev_b32 v4, 5, v4")
    e("v_and_b32 v8, 3, v1")
    e("v_lshl_add_u32 v4, v8, 3, v4")
    e("s_lshl_b32 s64, s52, 12")
    e("v_add_u32 v4, s64, v4")
    e("s_waitcnt lgkmcnt(0)")
    e("s_barrier")
    a.stamp()
    e("s_cmp_ge_u32 s52, 4")
    e("s_cbranch_scc1 K3_DOWN")
    e("s_setprio 3")
    for s in range(4):
        e(f"ds_read_b128 v[{64+4*s}:{67+4*s}], v6 offset:{64*s}")
        e(f"ds_read_b64_tr_b16 v[{80+4*s}:{81+4*s}], v4 offset:{K3_UV + 1024*s}")
        e(f"ds_read_b64_tr_b16 v[{82+4*s}:{83+4*s}], v4 offset:{K3_UV + 1024*s+128}")
    e("v_lshl_add_u32 v9, v2, 2, v7")
    e("v_and_b32 v5, 7, v9")
    e("v_lshlrev_b32 v9, 10, v9")
    e("v_lshl_add_u32 v9, v8, 3, v9")
    e("s_lshl_b32 s64, s52, 8")
    e(f"s_add_u32 s64, s64, {K3_WO}")
    e("v_add_u32 v9, s64, v9")
    for s in range(4):
        e(f"s_waitcnt lgkmcnt({9 - 3*s})")
        c = "v[32:35]" if s else "0"
        e(f"v_mfma_f32_16x16x32_bf16 v[32:35], v[{80+4*s}:{83+4*s}], v[{64+4*s}:{67+4*s}], {c}")
    e("v_lshlrev_b32 v4, 6, v3")
    e("v_lshl_add_u32 v4, v2, 4, v4")
    e("s_lshl_b32 s64, s52, 8")
    e(f"s_add_u32 s64, s64, {K3_CP}")
    e("v_add_u32 v4, s64, v4")
    e("v_and_b32 v6, 3, v3")
    e("v_lshlrev_b32 v6, 6, v6")
    e("v_lshl_add_u32 v6, v2, 4, v6")
    e(f"v_add_u32 v6, {K3_CP}, v6")
    e("s_mov_b64 exec, s[72:73]")
    e("ds_write_b128 v4, v[32:35]")
    e("s_mov_b64 exec, -1")
    e("s_waitcnt vmcnt(0) lgkmcnt(0)")
    e("s_barrier")
    for t in range(8):
        e(f"v_xor_b32 v10, {t}, v5")
        e("v_lshl_add_u32 v10, v10, 5, v9")
        e(f"ds_read_b64_tr_b16 v[{96+2*t}:{97+2*t}], v10")
    for w in range(4):
        e(f"ds_read_b128 v[{64+4*w}:{67+4*w}], v6 offset:{256*w}")
    e("s_lshl_b32 s64, s2, 13")
    e("s_lshl_b32 s65, s52, 11")
    e("s_add_u32 s64, s64, s65")
    e(f"s_add_u32 s64, s64, {WS_SP}")
    e("s_waitcnt lgkmcnt(0)")
    for c in range(4):
        e(f"v_add_f32 v{64+c}, v{64+c}, v{68+c}")
        e(f"v_add_f32 v{72+c}, v{72+c}, v{76+c}")
        e(f"v_add_f32 v{64+c}, v{64+c}, v{72+c}")
    e("v_cvt_pk_bf16_f32 v42, v64, v65")
    e("v_cvt_pk_bf16_f32 v43, v66, v67")
    e("s_nop 1")
    for t in range(8):
        e(f"v_mfma_f32_16x16x16_bf16 v[{64+4*t}:{67+4*t}], v[{96+2*t}:{97+2*t}], v[42:43], 0")
    e("s_nop 7")
    pack4(a, 64)
    pack4(a, 80)
    e("buffer_store_dwordx4 v[64:67], v11, s[48:51], s64 offen")
    e("buffer_store_dwordx4 v[80:83], v11, s[48:51], s64 offen offset:1024")
    e("s_branch K3_FIN")
    a.lab("K3_DOWN")
    e("s_cmp_lt_u32 s52, 12")
    e("s_cbranch_scc1 K3_DOWN2")
    e("s_waitcnt vmcnt(0)")
    e("s_barrier")
    e("s_branch K3_FIN")
    a.lab("K3_DOWN2")
    e("v_lshl_add_u32 v9, v2, 2, v7")
    e("v_min_u32 v9, 6, v9")
    e("v_lshlrev_b32 v5, 10, v9")
    e("v_lshl_add_u32 v5, v8, 3, v5")
    e(f"v_add_u32 v5, {K3_WD}, v5")
    e("s_sub_u32 s65, s52, 4")
    e("s_lshl_b32 s65, s65, 2")
    e("s_barrier")
    for t in range(4):
        e(f"s_add_u32 s66, s65, {t}")
        e("v_xor_b32 v6, s66, v9")
        e("v_lshl_add_u32 v6, v6, 5, v5")
        e(f"ds_read_b64_tr_b16 v[{96+2*t}:{97+2*t}], v6")
    e("v_mov_b32 v42, v22")
    e("v_mov_b32 v43, v23")
    e("s_waitcnt lgkmcnt(0)")
    e("s_add_u32 s66, s2, 256")
    e("s_lshl_b32 s66, s66, 13")
    for t in range(4):
        e(f"v_mfma_f32_16x16x16_bf16 v[{72+4*t}:{75+4*t}], v[{96+2*t}:{97+2*t}], v[42:43], 0")
    e("s_lshl_b32 s65, s65, 8")
    e("s_add_u32 s66, s66, s65")
    e(f"s_add_u32 s66, s66, {WS_SP}")
    e("s_nop 7")
    pack4(a, 72)
    e("buffer_store_dwordx4 v[72:75], v11, s[48:51], s66 offen")
    a.lab("K3_FIN")
    a.stamp()
    a.stamp_out(2)
    a.lab("K3_END")
    e("s_endpgm")

K4_LDS = 2048

def gen_k4(a):
    head(a, 'k4_kernel')
    e = a.e
    e("s_cmp_ge_u32 s2, 64")
    e("s_cbranch_scc1 K4_END")
    a.stamp()
    e("s_load_dwordx2 s[4:5], s[0:1], 0")
    e("s_load_dwordx2 s[8:9], s[0:1], 88")
    e("s_load_dwordx2 s[20:21], s[0:1], 104")
    e("v_and_b32 v1, 63, v0")
    e("v_lshrrev_b32 v4, 6, v0")
    e("v_lshrrev_b32 v2, 3, v0")
    e("v_readfirstlane_b32 s52, v4")
    e("s_lshr_b32 s53, s2, 3")
    e("s_and_b32 s54, s2, 7")
    e("v_and_b32 v3, 7, v0")
    e("v_lshlrev_b32 v4, 13, v2")
    e("v_lshl_add_u32 v4, v3, 4, v4")
    e("s_lshl_b32 s60, s2, 7")
    e(f"s_add_u32 s60, s60, {WS_SP}")
    e("v_bfe_u32 v8, v1, 2, 2")
    e("v_bfe_u32 v5, v1, 4, 1")
    e("v_lshlrev_b32 v5, 4, v5")
    e("v_and_b32 v6, 3, v1")
    e("v_add_u32 v5, v5, v6")
    e("s_lshl_b32 s61, s53, 6")
    e("s_and_b32 s62, s54, 1")
    e("s_lshl_b32 s62, s62, 5")
    e("s_add_u32 s61, s61, s62")
    e("s_lshr_b32 s62, s54, 1")
    e("s_lshl_b32 s62, s62, 2")
    e("s_add_u32 s61, s61, s62")
    e("v_add_u32 v5, s61, v5")
    e("v_lshlrev_b32 v5, 1, v5")
    e("v_lshl_add_u32 v5, v8, 10, v5")
    e("v_lshlrev_b32 v6, 2, v8")
    e("s_waitcnt lgkmcnt(0)")
    a.srd(24, 4, 4096)
    a.srd(28, 8, 4096)
    a.srd(48, 20, WS_END)
    for i in range(8):
        e(f"s_add_u32 s61, s60, {i*64*8192}")
        e(f"buffer_load_dwordx4 v[{16+4*i}:{19+4*i}], v4, s[48:51], s61 offen")
    e("buffer_load_ushort v50, v5, s[24:27], 0 offen")
    e(f"s_mov_b32 s62, {WS_XN}")
    e("buffer_load_ushort v51, v5, s[48:51], s62 offen")
    e(f"s_mov_b32 s62, {WS_RS}")
    e("buffer_load_dword v52, v6, s[48:51], s62 offen")
    a.stamp()
    e("s_waitcnt vmcnt(3)")
    a.stamp()
    for c in range(4):
        e(f"v_add_f32 v{16+c}, v{16+c}, v{20+c}")
        e(f"v_add_f32 v{24+c}, v{24+c}, v{28+c}")
        e(f"v_add_f32 v{16+c}, v{16+c}, v{24+c}")
        e(f"v_add_f32 v{32+c}, v{32+c}, v{36+c}")
        e(f"v_add_f32 v{40+c}, v{40+c}, v{44+c}")
        e(f"v_add_f32 v{20+c}, v{32+c}, v{40+c}")
    e("s_nop 1")
    for c in range(8):
        e(f"v_add_f32_dpp v{16+c}, v{16+c}, v{16+c} row_shr:8 row_mask:0xf bank_mask:0xf bound_ctrl:0")
    for c in range(8):
        e(f"v_mov_b32 v{24+c}, v{16+c}")
    e("s_nop 1")
    for c in range(8):
        e(f"v_permlane32_swap_b32 v{16+c}, v{24+c}")
    e("s_nop 1")
    for c in range(8):
        e(f"v_add_f32 v{16+c}, v{16+c}, v{24+c}")
    for c in range(8):
        e(f"v_mov_b32 v{24+c}, v{16+c}")
    e("s_nop 1")
    for c in range(8):
        e(f"v_permlane16_swap_b32 v{16+c}, v{24+c}")
    e("s_nop 1")
    for c in range(8):
        e(f"v_add_f32 v{16+c}, v{16+c}, v{24+c}")
    e("s_lshl_b32 s62, s52, 8")
    e("v_lshl_add_u32 v6, v3, 4, s62")
    e("v_and_b32 v7, 56, v1")
    e("v_cmp_eq_u32 vcc, 8, v7")
    e("s_and_saveexec_b64 s[72:73], vcc")
    e("ds_write_b128 v6, v[16:19]")
    e("ds_write_b128 v6, v[20:23] offset:128")
    e("s_mov_b64 exec, s[72:73]")
    e("s_waitcnt lgkmcnt(0)")
    e("s_barrier")
    e("s_cmp_lg_u32 s52, 0")
    e("s_cbranch_scc1 K4_FIN")
    e("v_and_b32 v6, 31, v1")
    e("v_lshlrev_b32 v6, 2, v6")
    for w in range(8):
        e(f"ds_read_b32 v{16+w}, v6 offset:{256*w}")
        e(f"ds_read_b32 v{24+w}, v6 offset:{256*w+128}")
    e("s_waitcnt vmcnt(0) lgkmcnt(0)")
    for w in range(1, 8):
        e(f"v_add_f32 v16, v16, v{16+w}")
        e(f"v_add_f32 v24, v24, v{24+w}")
    a.rne(16, 16)
    a.rne(20, 24)
    e("v_mul_f32 v20, v20, v52")
    a.rne(20, 20)
    e("v_lshlrev_b32 v51, 16, v51")
    e("v_lshlrev_b32 v50, 16, v50")
    e("v_add_f32 v20, v51, v20")
    a.rne(20, 20)
    e(f"v_mul_f32 v21, {hex(NLOG2E)}, v20")
    e("v_exp_f32 v21, v21")
    e("s_nop 0")
    e("v_add_f32 v21, 1.0, v21")
    e("v_rcp_f32 v21, v21")
    e("s_nop 0")
    e("v_mul_f32 v20, v20, v21")
    a.rne(20, 20)
    e("v_mul_f32 v16, v16, v20")
    a.rne(16, 16)
    e("v_add_f32 v16, v50, v16")
    e("v_cvt_pk_bf16_f32 v16, v16, v16")
    e("v_cmp_gt_u32 vcc, 32, v1")
    e("s_and_saveexec_b64 s[72:73], vcc")
    e("buffer_store_short v16, v5, s[28:31], 0 offen")
    a.lab("K4_FIN")
    a.stamp()
    a.stamp_out(3)
    a.lab("K4_END")
    e("s_endpgm")


def build():
    hdr = open(REF).read().split('; Override')[0]
    s = hdr
    s += f"; @launch kernel=k1_kernel grid=(256,1,1) block=(1024,1,1) lds={K1_LDS}\n"
    s += f"; @launch kernel=k2_kernel grid=(256,1,1) block=(1024,1,1) lds={K2_LDS}\n"
    s += f"; @launch kernel=k3_kernel grid=(256,1,1) block=(1024,1,1) lds={K3_LDS}\n"
    s += f"; @launch kernel=k4_kernel grid=(64,1,1) block=(512,1,1) lds={K4_LDS}\n"
    s += '.amdgcn_target "amdgcn-amd-amdhsa--gfx950"\n.text\n'
    a = A()
    gen_k1(a); gen_k2(a); gen_k3(a); gen_k4(a)
    s += a.text()
    s += '.section .rodata,"a"\n'
    s += kd('k1_kernel', 128) + kd('k2_kernel', 128) + kd('k3_kernel', 128) + kd('k4_kernel', 64)
    return s

if __name__ == '__main__':
    out = sys.argv[1]
    if 'stamp' in FL:
        STAMP = True
    txt = build()
    if 'keepnt' not in FL:
        txt = txt.replace(' nt', '')
    lines = []
    for ln in txt.split('\n'):
        if 'buffer_store_' in ln and 's74' not in ln:
            ln = ln.rstrip() + ' sc1'
        lines.append(ln)
    open(out, 'w').write('\n'.join(lines))
```
